```python
import torch

def _softmax(x, axis=-1):
    return torch.softmax(x, dim=axis)
def _gelu(x):
    return torch.nn.functional.gelu(x, approximate="tanh")
def _silu(x):
    return torch.nn.functional.silu(x)
def _sigmoid(x):
    return torch.sigmoid(x)
def _layernorm(x, axis=-1, eps=1e-5):
    m = x.mean(dim=axis, keepdim=True)
    v = x.var(dim=axis, keepdim=True, unbiased=False)
    return (x - m) / torch.sqrt(v + eps)
def _scatter_add(tgt, idx, src, axis=0):
    return tgt.clone().index_add_(axis, idx, src)
def _segment_sum(src, seg, n):
    out = torch.zeros((n,) + src.shape[1:], dtype=src.dtype)
    return out.index_add_(0, seg, src)
def _pad(x, pw):
    flat = tuple(v for pair in reversed(pw) for v in pair)
    return torch.nn.functional.pad(x, flat)

kernel_name = 'standalone__sequential_behavior_din__recsys'

def setup_inputs():

    _w = (lambda a: (lambda t: t.to(torch.bfloat16) if t.is_floating_point() else t)(torch.as_tensor(a)))
    B, L, D = 4096, 50, 64
    H = D
    return {
        "target": _w((lambda *s: torch.randn(*s, dtype=torch.bfloat16) * 3.2)(B, D)),
        "hist": _w((lambda *s: torch.randn(*s, dtype=torch.bfloat16) * 3.2)(B, L, D)),
        "mask": _w((lambda lo, hi, *s: torch.randint(lo, hi, s))(0, 2, B, L).to(float)),
        "w1": _w((lambda *s: torch.randn(*s, dtype=torch.bfloat16) * 3.2)(4 * D, H) * (4 * D) ** -0.5),
        "b1": _w((lambda *s: torch.randn(*s, dtype=torch.bfloat16) * 3.2)(H) * 0.1),
        "w2": _w((lambda *s: torch.randn(*s, dtype=torch.bfloat16) * 0.05)(H, 1) * H ** -0.5),
        "b2": _w((lambda *s: torch.randn(*s, dtype=torch.bfloat16) * 0.05)(1) * 0.1),
    }

def reference(target, hist, mask, w1, b1, w2, b2):
    L = hist.shape[1]
    tgt = (lambda x, n, axis: torch.repeat_interleave(x, n, dim=axis))(target[:, None, :], L, axis=1)
    feat = torch.concatenate([hist, tgt, hist - tgt, hist * tgt], axis=-1)
    h = _sigmoid(feat @ w1 + b1)
    scores = (h @ w2 + b2)[..., 0] * mask
    return torch.einsum('bl,bld->bd', scores, hist)
```

```python
import re

TRANS = ("v_exp_f32", "v_log_f32", "v_rcp_f32", "v_rsq_f32", "v_sqrt_f32", "v_sin_f32", "v_cos_f32",
         "v_exp_f16", "v_rcp_f16", "v_rcp_iflag_f32")

_REG = re.compile(r"\b([vsa])\[(\d+):(\d+)\]|\b([vsa])(\d+)\b|\b(vcc|exec|m0|scc)(_lo|_hi)?\b")


def regs_of(tok):
    out = []
    for m in _REG.finditer(tok):
        if m.group(1):
            out += [(m.group(1), i) for i in range(int(m.group(2)), int(m.group(3)) + 1)]
        elif m.group(4):
            out.append((m.group(4), int(m.group(5))))
        else:
            out.append((m.group(6), 0))
    return out


class Ins:
    __slots__ = ("text", "op", "kind", "w", "r", "srcc", "ab", "states", "passes")

    def __init__(self, text):
        self.text = text
        t = text.split(";")[0].strip()
        parts = t.split(None, 1)
        self.op = parts[0]
        ops = [o.strip() for o in parts[1].split(",")] if len(parts) > 1 else []
        if ops:
            last = ops[-1].split()
            ops[-1] = last[0] if last else ""
        op = self.op
        self.w, self.r, self.srcc, self.ab = [], [], [], []
        self.states = 1
        self.passes = 0
        if op == "s_nop":
            self.kind = "nop"
            self.states = int(ops[0], 0) + 1
        elif op.startswith("v_mfma"):
            self.kind = "mfma"
            self.passes = 8 if "32x32" in op else 4
            self.w = regs_of(ops[0])
            self.ab = regs_of(ops[1]) + regs_of(ops[2])
            self.srcc = regs_of(ops[3])
            self.r = self.ab + self.srcc
        elif op.startswith("v_"):
            self.kind = "valu"
            self.w = regs_of(ops[0])
            self.r = [x for o in ops[1:] for x in regs_of(o)]
            if op.startswith("v_cndmask") and len(ops) == 3:
                self.r.append(("vcc", 0))
            if op.startswith(("v_fmac", "v_permlane", "v_dot2c")) or "d16" in op or "_sdwa" in op:
                self.r += self.w
            if op.startswith("v_permlane"):
                self.w += regs_of(ops[1])
            if op.startswith(("v_add_co", "v_addc_co", "v_sub_co")):
                self.w += regs_of(ops[1])
        elif op.startswith("ds_"):
            self.kind = "ds"
            if op.startswith(("ds_write", "ds_add", "ds_or")):
                self.r = [x for o in ops for x in regs_of(o)]
            else:
                self.w = regs_of(ops[0])
                self.r = [x for o in ops[1:] for x in regs_of(o)]
        elif op.startswith(("global_", "buffer_")):
            self.kind = "vmem"
            if "store" in op or "_lds_" in op or " lds" in t:
                self.r = [x for o in ops for x in regs_of(o)]
                if "_lds_" in op or " lds" in t:
                    self.r.append(("m0", 0))
            else:
                self.w = regs_of(ops[0])
                self.r = [x for o in ops[1:] for x in regs_of(o)]
        elif op.startswith("s_"):
            self.kind = "salu"
            if op.startswith(("s_cmp", "s_waitcnt", "s_barrier", "s_branch", "s_cbranch", "s_endpgm", "s_setprio", "s_sleep")):
                self.r = [x for o in ops for x in regs_of(o)] if op.startswith("s_cmp") else []
            else:
                self.w = regs_of(ops[0]) if ops else []
                self.r = [x for o in ops[1:] for x in regs_of(o)]
        else:
            raise ValueError("unknown instr " + text)


def _ov(a, b):
    return bool(set(a) & set(b))


def required(p, i):
    need = 0
    xd = {4: 8, 8: 12}
    if p.kind == "valu":
        vw = [x for x in p.w if x[0] in "va"]
        sw = [x for x in p.w if x[0] in ("s", "vcc")]
        if i is None:
            if vw:
                need = max(need, 2)
            if sw:
                need = max(need, 5)
            return need
        if i.kind == "mfma" and _ov(vw, i.r):
            need = max(need, 2)
        if p.op.startswith(TRANS) and i.kind == "valu" and not i.op.startswith(TRANS) and _ov(vw, i.r):
            need = max(need, 1)
        if i.op.startswith(("v_readfirstlane", "v_readlane")) and _ov(vw, i.r):
            need = max(need, 1)
        if (i.op.startswith("v_permlane") or "dpp" in i.text) and _ov(vw, i.r):
            need = max(need, 2)
        if ("_sdwa" in p.op or "op_sel" in p.text) and i.kind == "valu" and (_ov(vw, i.r) or _ov(vw, i.w)):
            need = max(need, 1)
        if sw and _ov(sw, i.r):
            if i.kind == "valu":
                need = max(need, 4 if i.op.startswith(("v_readlane", "v_writelane")) else 2)
            elif i.kind == "vmem":
                need = max(need, 5)
            elif i.kind == "salu":
                need = max(need, 1)
    elif p.kind == "mfma":
        n = xd[p.passes]
        if i is None:
            return n
        if i.kind == "mfma":
            if _ov(p.w, i.ab):
                need = max(need, n)
            if _ov(p.w, i.srcc):
                if not (p.w == i.srcc and p.passes == i.passes):
                    need = max(need, n - 2)
            elif _ov(p.w, i.w):
                need = max(need, n - 2)
        elif i.kind in ("valu", "ds", "vmem"):
            if _ov(p.w, i.r) or _ov(p.w, i.w):
                need = max(need, n)
            if i.kind == "valu" and _ov(p.srcc, i.w):
                need = max(need, {4: 3, 8: 7}[p.passes])
    elif p.kind == "salu":
        if ("m0", 0) in p.w:
            if i is None or (i.kind == "vmem" and ("m0", 0) in i.r):
                need = max(need, 1)
    elif p.kind == "vmem":
        if "store" in p.op and ("x4" in p.op or "x3" in p.op):
            if i is None or _ov([x for x in p.r if x[0] == "v"], i.w):
                need = max(need, 2)
    return need


class Gen:
    def __init__(self):
        self.lines = []
        self.hist = []
        self.nv = 0
        self.ns = 0
        self.names = {}
        self.nops = 0

    def vreg(self, n=1, align=None, name=None):
        a = align or (1 if n == 1 else 2 if n == 2 else 4)
        self.nv = (self.nv + a - 1) // a * a
        b = self.nv
        self.nv += n
        return b

    def sreg(self, n=1, align=None):
        a = align or (1 if n == 1 else 2 if n == 2 else 4)
        self.ns = (self.ns + a - 1) // a * a
        b = self.ns
        self.ns += n
        return b

    def raw(self, s):
        self.lines.append(s)

    def comment(self, s):
        self.lines.append("    ; " + s)

    def _pad(self, ins):
        dist = 0
        need = 0
        for p in reversed(self.hist):
            rq = required(p, ins)
            if rq > dist:
                need = max(need, rq - dist)
            dist += p.states
            if dist > 24:
                break
        if need:
            n = Ins(f"s_nop {need - 1}")
            self.lines.append(f"    s_nop {need - 1}")
            self.hist.append(n)
            self.nops += need

    def __call__(self, text):
        ins = Ins(text)
        self._pad(ins)
        self.lines.append("    " + text)
        self.hist.append(ins)
        self.hist = self.hist[-40:]

    def flush(self):
        self._pad(None)

    def label(self, name):
        self.flush()
        self.lines.append(name + ":")

    def branch(self, text):
        self.flush()
        self(text)

    def text(self):
        return "\n".join(self.lines) + "\n"


def v(b, n=1):
    return f"v{b}" if n == 1 else f"v[{b}:{b + n - 1}]"


def s(b, n=1):
    return f"s{b}" if n == 1 else f"s[{b}:{b + n - 1}]"
```

```python
import sys, struct
sys.path.insert(0, "tools")
from asmgen import Gen, v, s

KN = "standalone__sequential_behavior_din__recsys_kernel"


def f32bits(x):
    return struct.unpack("<I", struct.pack("<f", x))[0]


def bf16_rne(x):
    u = f32bits(x)
    return ((u + 0x7FFF + ((u >> 16) & 1)) >> 16) & 0xFFFF


def bf16_to_f(h):
    return struct.unpack("<f", struct.pack("<I", h << 16))[0]


KAPPA = -1.4426950408889634
K1 = bf16_rne(KAPPA)
K2 = bf16_rne(KAPPA - bf16_to_f(K1))

HB = 0
SB = 81920
WB = 114688
CB = 131072
DB = 135168
ZB = 151552
MB = 152576
LDS_BYTES = MB + 8 * 1280


def gen(debug=False):
    g = Gen()
    A = g
    hdr = open("standalone__sequential_behavior_din__recsys.s.ref").read().split("\n")
    for ln in hdr:
        if ln.startswith("; @launch"):
            break
        g.raw(ln)
    g.raw(f"; @launch grid=(256,1,1) block=(512,1,1) lds={LDS_BYTES}")
    g.raw('.amdgcn_target "amdgcn-amd-amdhsa--gfx950"')
    g.raw(".text")
    g.raw(f".globl {KN}")
    g.raw(".p2align 8")
    g.raw(f".type {KN},@function")
    g.raw(f"{KN}:")

    g.ns = 4
    sP = g.sreg(16)
    sTG, sHI, sMK, sW1, sB1, sW2, sB2, sOUT = [sP + 2 * i for i in range(8)]
    sW = g.sreg()
    sB0 = g.sreg()
    sT0 = g.sreg(); sT1 = g.sreg()
    sSRD = g.sreg(4); sHo = g.sreg(); sMb = g.sreg(2); sTb = g.sreg(2); sTtb = g.sreg(2); sWb = g.sreg(2); sB1b = g.sreg(2); sOb = g.sreg(2)
    sA0 = g.sreg(2); sA1 = g.sreg(2); sVal = g.sreg(2); sTmp2 = g.sreg(2)
    sN0 = g.sreg(); sN1 = g.sreg(); sT = g.sreg(); sT3 = g.sreg()
    sScr = g.sreg(); sHBw = g.sreg(); sOVw = g.sreg()
    sTi = g.sreg(); sRel = g.sreg(); sCur = g.sreg(); sNeed = g.sreg(); sCont = g.sreg(); sTB = g.sreg(); sPB = g.sreg(); sRem = g.sreg()

    g.nv = 1
    vLane = g.vreg(); vN = g.vreg(); vG = g.vreg(); vHC = g.vreg()
    vT0 = g.vreg(); vT1 = g.vreg(); vT2 = g.vreg(); vT3 = g.vreg()
    vTh = [g.vreg(), g.vreg()]; vTlo = [g.vreg(), g.vreg()]
    vDW = g.vreg(); vDR = g.vreg(); vWR = g.vreg()
    vC0 = g.vreg(); vC1 = g.vreg(); vCA = g.vreg()
    vBoff = g.vreg(); vZoff = g.vreg(); vBA = g.vreg()
    vTRoff = g.vreg(); vTRA = g.vreg()
    vMA = g.vreg(); vRA = g.vreg()
    vR = [g.vreg() for _ in range(2)]
    vOA = g.vreg()
    vWd = g.vreg(64)
    vWeff = g.vreg(32)
    vD1 = g.vreg(16)
    vBT = g.vreg(32)
    vH = vBT
    vX = g.vreg(16)
    vDA = vX; vHB = vX; vTRr = vX + 8
    vW2 = g.vreg(8)
    vD3 = g.vreg(16)
    vD2 = g.vreg(4); vB2C = g.vreg(4); vM = g.vreg(4); vS = g.vreg(2)
    vZ4 = vD1
    vM0 = vD1 + 4; vM1 = vD1 + 5; vTl0 = vD1 + 6; vTl1 = vD1 + 7; vB2 = vD1 + 8
    vL2 = vD1 + 9; vL16 = vD1 + 10; vS8 = vD1 + 11; vWo0 = vD1 + 12; vWo1 = vD1 + 13; vTt = vD1 + 14; vG8 = vD1 + 15
    vTtB = vWeff
    vB1 = vWeff + 8
    vP0 = vWeff + 10; vP1 = vWeff + 11; vRow = vWeff + 12
    vRq = [vWeff + 13 + q for q in range(6)]
    vKI = vWeff + 20
    vWtr = [vWeff + 24, vWeff + 25]; vWtw = [vWeff + 26, vWeff + 27]; vCtr = [vWeff + 28, vWeff + 29]
    vB1f = vD2

    A("s_cmp_ge_u32 s2, 256")
    A("s_cbranch_scc1 L_end")
    A(f"s_load_dwordx16 {s(sP,16)}, s[0:1], 0")
    A(f"v_and_b32 {v(vLane)}, 63, v0")
    A(f"v_lshrrev_b32 {v(vT0)}, 6, v0")
    A(f"v_and_b32 {v(vN)}, 15, v0")
    A(f"v_readfirstlane_b32 {s(sW)}, {v(vT0)}")
    A(f"v_lshrrev_b32 {v(vG)}, 4, {v(vLane)}")
    A(f"v_lshlrev_b32 {v(vL2)}, 1, {v(vLane)}")
    A(f"v_lshlrev_b32 {v(vL16)}, 4, {v(vLane)}")
    A(f"v_and_b32 {v(vT0)}, 1, {v(vLane)}")
    A(f"v_lshlrev_b32 {v(vT0)}, 4, {v(vT0)}")
    A(f"v_lshl_add_u32 {v(vHC)}, {v(vG)}, 5, {v(vT0)}")
    A(f"v_lshrrev_b32 {v(vS8)}, 1, {v(vN)}")
    A(f"v_lshl_add_u32 {v(vWo0)}, {v(vS8)}, 7, {v(vHC)}")
    A(f"v_xor_b32 {v(vT0)}, 4, {v(vS8)}")
    A(f"v_lshl_add_u32 {v(vWo1)}, {v(vT0)}, 7, {v(vHC)}")
    A(f"v_lshlrev_b32 {v(vT0)}, 4, {v(vG)}")
    A(f"v_lshl_add_u32 {v(vTt)}, {v(vN)}, 7, {v(vT0)}")
    A(f"v_lshlrev_b32 {v(vG8)}, 3, {v(vG)}")
    for r in (vZ4, vZ4 + 1, vZ4 + 2, vZ4 + 3, vM0, vM1, vTl0, vTl1, vB2):
        A(f"v_mov_b32 {v(r)}, 0")
    A(f"s_lshl_b32 {s(sB0)}, s2, 4")
    A(f"s_lshl_b32 {s(sT0)}, {s(sW)}, 1")
    A(f"s_add_u32 {s(sB0)}, {s(sB0)}, {s(sT0)}")
    A(f"s_mul_i32 {s(sScr)}, {s(sW)}, 1280")
    A(f"s_add_u32 {s(sScr)}, {s(sScr)}, {MB}")
    A(f"s_mul_i32 {s(sHBw)}, {s(sW)}, 10240")
    A(f"s_lshl_b32 {s(sOVw)}, {s(sW)}, 12")
    A(f"s_add_u32 {s(sOVw)}, {s(sOVw)}, {SB}")
    A(f"s_mov_b32 m0, {s(sOVw)}")
    A(f"s_mul_i32 {s(sT0)}, {s(sB0)}, 100")
    A(f"s_lshl_b32 {s(sT1)}, {s(sB0)}, 7")
    A("s_waitcnt lgkmcnt(0)")
    A(f"s_add_u32 {s(sMb)}, {s(sMK)}, {s(sT0)}")
    A(f"s_addc_u32 {s(sMb+1)}, {s(sMK+1)}, 0")
    A(f"s_add_u32 {s(sTb)}, {s(sTG)}, {s(sT1)}")
    A(f"s_addc_u32 {s(sTb+1)}, {s(sTG+1)}, 0")
    A("s_mov_b32 exec_hi, 0x3ffff")
    A(f"global_load_short_d16_hi {v(vM0)}, {v(vL2)}, {s(sMb,2)}")
    A(f"global_load_short_d16_hi {v(vM1)}, {v(vL2)}, {s(sMb,2)} offset:100")
    A("s_mov_b32 exec_hi, -1")
    A(f"global_load_short_d16_hi {v(vTl0)}, {v(vL2)}, {s(sTb,2)}")
    A(f"global_load_short_d16_hi {v(vTl1)}, {v(vL2)}, {s(sTb,2)} offset:128")
    A(f"s_lshl_b32 {s(sT0)}, {s(sW)}, 12")
    A(f"s_add_u32 {s(sWb)}, {s(sW1)}, {s(sT0)}")
    A(f"s_addc_u32 {s(sWb+1)}, {s(sW1+1)}, 0")
    for q in range(4):
        x = (q ^ (q >> 1)) & 1
        A(f"global_load_lds_dwordx4 {v(vWo1 if x else vWo0)}, {s(sWb,2)} offset:{q*1024}")
    A(f"s_lshl_b32 {s(sT0)}, s2, 11")
    A(f"s_add_u32 {s(sTtb)}, {s(sTG)}, {s(sT0)}")
    A(f"s_addc_u32 {s(sTtb+1)}, {s(sTG+1)}, 0")
    A(f"global_load_dwordx4 {v(vTtB,4)}, {v(vTt)}, {s(sTtb,2)}")
    A(f"global_load_dwordx4 {v(vTtB+4,4)}, {v(vTt)}, {s(sTtb,2)} offset:64")
    for q in range(4):
        A(f"global_load_dwordx2 {v(vW2+2*q,2)}, {v(vG8)}, {s(sW2,2)} offset:{q*32}")
    A(f"s_and_b32 {s(sT0)}, {s(sW)}, 3")
    A(f"s_lshl_b32 {s(sT0)}, {s(sT0)}, 5")
    A(f"s_add_u32 {s(sB1b)}, {s(sB1)}, {s(sT0)}")
    A(f"s_addc_u32 {s(sB1b+1)}, {s(sB1+1)}, 0")
    A(f"global_load_dwordx2 {v(vB1,2)}, {v(vG8)}, {s(sB1b,2)}")
    A(f"global_load_short_d16_hi {v(vB2)}, {v(vZ4)}, {s(sB2,2)}")
    A(f"s_mul_i32 {s(sHo)}, {s(sB0)}, 6400")
    A(f"s_mov_b32 {s(sSRD)}, {s(sHI)}")
    A(f"s_and_b32 {s(sSRD+1)}, {s(sHI+1)}, 0xffff")
    A(f"s_mov_b32 {s(sSRD+2)}, 26214400")
    A(f"s_mov_b32 {s(sSRD+3)}, 0x00020000")
    A(f"s_add_u32 {s(sOb)}, {s(sOUT)}, {s(sT1)}")
    A(f"s_addc_u32 {s(sOb+1)}, {s(sOUT+1)}, 0")
    A(f"v_add_u32 {v(vT0)}, {s(sScr)}, {v(vL16)}")
    A(f"ds_write_b128 {v(vT0)}, {v(vZ4,4)}")
    A(f"v_lshl_add_u32 {v(vT1)}, {v(vLane)}, 2, {s(sScr)}")
    A(f"ds_write_b32 {v(vT1)}, {v(vZ4)} offset:1024")
    A(f"s_lshl_b32 {s(sT0)}, {s(sW)}, 11")
    A(f"s_add_u32 {s(sT0)}, {s(sT0)}, {DB}")
    A(f"v_add_u32 {v(vT0)}, {s(sT0)}, {v(vL16)}")
    A(f"ds_write_b128 {v(vT0)}, {v(vZ4,4)}")
    A(f"ds_write_b128 {v(vT0)}, {v(vZ4,4)} offset:1024")
    A(f"v_add_u32 {v(vT0)}, {ZB}, {v(vL16)}")
    A(f"ds_write_b128 {v(vT0)}, {v(vZ4,4)}")
    A(f"v_lshrrev_b32 {v(vT0)}, 5, {v(vLane)}")
    A(f"v_bfe_u32 {v(vT1)}, {v(vLane)}, 2, 1")
    A(f"v_lshl_add_u32 {v(vT0)}, {v(vT0)}, 1, {v(vT1)}")
    A(f"v_bfe_u32 {v(vT1)}, {v(vLane)}, 3, 2")
    A(f"v_and_b32 {v(vT2)}, 3, {v(vLane)}")
    A(f"v_lshl_add_u32 {v(vT1)}, {v(vT1)}, 2, {v(vT2)}")
    A(f"v_lshl_add_u32 {v(vDW)}, {v(vT0)}, 8, {s(sT0)}")
    A(f"v_lshl_add_u32 {v(vDW)}, {v(vT1)}, 4, {v(vDW)}")
    A(f"v_and_b32 {v(vT1)}, 7, {v(vT1)}")
    A(f"v_lshl_add_u32 {v(vDW)}, {v(vT1)}, 1, {v(vDW)}")
    A(f"v_lshrrev_b32 {v(vT0)}, 1, {v(vG)}")
    A(f"v_lshl_add_u32 {v(vT0)}, {v(vT0)}, 10, {s(sT0)}")
    A(f"v_lshrrev_b32 {v(vT1)}, 3, {v(vN)}")
    A(f"v_and_b32 {v(vT2)}, 1, {v(vG)}")
    A(f"v_cmp_eq_u32 vcc, {v(vT1)}, {v(vT2)}")
    A(f"v_mov_b32 {v(vT3)}, {ZB}")
    A(f"v_cndmask_b32 {v(vT0)}, {v(vT3)}, {v(vT0)}, vcc")
    A(f"v_lshl_add_u32 {v(vDR)}, {v(vN)}, 4, {v(vT0)}")
    A(f"v_cmp_gt_u32 {s(sTmp2,2)}, 2, {v(vG)}")
    A(f"v_mov_b32 {v(vT0)}, {K2}")
    A(f"v_mov_b32 {v(vT1)}, {K1}")
    A(f"v_cndmask_b32 {v(vT0)}, {v(vT0)}, {v(vT1)}, {s(sTmp2,2)}")
    A(f"v_cndmask_b32 {v(vT0)}, 0, {v(vT0)}, vcc")
    A(f"v_and_b32 {v(vT1)}, 1, {v(vN)}")
    A(f"v_lshlrev_b32 {v(vT1)}, 4, {v(vT1)}")
    A(f"v_lshlrev_b32 {v(vT0)}, {v(vT1)}, {v(vT0)}")
    A(f"v_bfe_u32 {v(vT1)}, {v(vN)}, 1, 2")
    for q in range(4):
        A(f"v_cmp_eq_u32 vcc, {q}, {v(vT1)}")
        A(f"v_cndmask_b32 {v(vKI+q)}, 0, {v(vT0)}, vcc")
    A(f"v_add_u32 {v(vWR)}, {WB}, {v(vL16)}")
    A(f"s_lshl_b32 {s(sT0)}, {s(sW)}, 9")
    A(f"s_add_u32 {s(sT0)}, {s(sT0)}, {CB}")
    A(f"v_lshl_add_u32 {v(vC0)}, {v(vG)}, 4, {s(sT0)}")
    A(f"v_add_u32 {v(vC1)}, 256, {v(vC0)}")
    A(f"v_lshrrev_b32 {v(vT0)}, 1, {v(vG)}")
    A(f"v_lshlrev_b32 {v(vT0)}, 8, {v(vT0)}")
    A(f"v_and_b32 {v(vT1)}, 7, {v(vN)}")
    A(f"v_lshl_add_u32 {v(vT0)}, {v(vT1)}, 5, {v(vT0)}")
    A(f"v_and_b32 {v(vT1)}, 1, {v(vG)}")
    A(f"v_lshl_add_u32 {v(vT0)}, {v(vT1)}, 4, {v(vT0)}")
    A(f"v_add_u32 {v(vZoff)}, {ZB}, {v(vT0)}")
    A(f"v_lshrrev_b32 {v(vT1)}, 3, {v(vN)}")
    A(f"v_lshl_add_u32 {v(vBoff)}, {v(vT1)}, 10, {v(vT0)}")
    A(f"v_lshrrev_b32 {v(vT0)}, 2, {v(vN)}")
    A(f"v_and_b32 {v(vT1)}, 3, {v(vN)}")
    A(f"v_lshlrev_b32 {v(vT1)}, 3, {v(vT1)}")
    A(f"v_lshl_add_u32 {v(vT1)}, {v(vT0)}, 5, {v(vT1)}")
    A(f"v_and_b32 {v(vT2)}, 1, {v(vG)}")
    A(f"v_lshl_add_u32 {v(vTRoff)}, {v(vT2)}, 7, {v(vT1)}")
    A(f"v_lshrrev_b32 {v(vT3)}, 1, {v(vG)}")
    A(f"v_lshl_add_u32 {v(vTRoff)}, {v(vT3)}, 10, {v(vTRoff)}")
    A(f"v_lshl_add_u32 {v(vT0)}, {v(vT2)}, 11, {v(vT1)}")
    A(f"v_add_u32 {v(vT0)}, {SB}, {v(vT0)}")
    A(f"v_lshl_add_u32 {v(vWtr[0])}, {v(vT2)}, 7, {v(vT0)}")
    A(f"v_xor_b32 {v(vT3)}, 1, {v(vT2)}")
    A(f"v_lshl_add_u32 {v(vWtr[1])}, {v(vT3)}, 7, {v(vT0)}")
    A(f"s_lshr_b32 {s(sT0)}, {s(sW)}, 2")
    A(f"s_lshl_b32 {s(sT0)}, {s(sT0)}, 12")
    A(f"s_and_b32 {s(sT1)}, {s(sW)}, 3")
    A(f"s_lshl_b32 {s(sT1)}, {s(sT1)}, 8")
    A(f"s_add_u32 {s(sT0)}, {s(sT0)}, {s(sT1)}")
    A(f"v_add_u32 {v(vWtw[0])}, {s(sT0)}, {v(vWtr[0])}")
    A(f"v_add_u32 {v(vWtw[1])}, {s(sT0)}, {v(vWtr[1])}")
    A(f"v_lshrrev_b32 {v(vT3)}, 1, {v(vG)}")
    A(f"v_xor_b32 {v(vT3)}, {v(vT3)}, {v(vT2)}")
    A(f"v_lshl_add_u32 {v(vT0)}, {v(vG)}, 10, {v(vT1)}")
    A(f"s_add_u32 {s(sT1)}, {s(sT1)}, {SB}")
    A(f"v_add_u32 {v(vT0)}, {s(sT1)}, {v(vT0)}")
    A(f"v_lshl_add_u32 {v(vCtr[0])}, {v(vT3)}, 7, {v(vT0)}")
    A(f"v_xor_b32 {v(vT3)}, 1, {v(vT3)}")
    A(f"v_lshl_add_u32 {v(vCtr[1])}, {v(vT3)}, 7, {v(vT0)}")
    A(f"v_lshrrev_b32 {v(vT0)}, 3, {v(vN)}")
    A(f"v_mul_u32_u24 {v(vT1)}, 448, {v(vT0)}")
    A(f"v_lshl_add_u32 {v(vT1)}, {v(vG)}, 4, {v(vT1)}")
    A(f"v_add_u32 {v(vMA)}, {s(sScr)}, {v(vT1)}")
    A(f"v_lshl_add_u32 {v(vOA)}, {v(vT0)}, 7, {v(vG8)}")
    A(f"v_lshl_add_u32 {v(vRA)}, {v(vS8)}, 1, {s(sScr)}")
    A(f"v_lshlrev_b32 {v(vRow)}, 7, {v(vLane)}")
    for i in range(16):
        A(f"v_mov_b32 {v(vD3+i)}, 0")

    A("s_waitcnt vmcnt(14)")
    A(f"v_cmp_neq_f32 {s(sA0,2)}, 0, {v(vM0)}")
    A(f"v_cmp_neq_f32 {s(sA1,2)}, 0, {v(vM1)}")
    A(f"s_bcnt1_i32_b64 {s(sN0)}, {s(sA0,2)}")
    A(f"s_bcnt1_i32_b64 {s(sN1)}, {s(sA1,2)}")
    A(f"v_mbcnt_lo_u32_b32 {v(vP0)}, {s(sA0)}, 0")
    A(f"v_mbcnt_hi_u32_b32 {v(vP0)}, {s(sA0+1)}, {v(vP0)}")
    A(f"v_mov_b32 {v(vP1)}, {s(sN0)}")
    A(f"v_mbcnt_lo_u32_b32 {v(vP1)}, {s(sA1)}, {v(vP1)}")
    A(f"v_mbcnt_hi_u32_b32 {v(vP1)}, {s(sA1+1)}, {v(vP1)}")
    A(f"v_lshl_add_u32 {v(vT0)}, {v(vP0)}, 2, {s(sScr)}")
    A(f"v_lshl_add_u32 {v(vT1)}, {v(vP0)}, 1, {s(sScr)}")
    A(f"v_lshl_add_u32 {v(vT2)}, {v(vP1)}, 2, {s(sScr)}")
    A(f"v_lshl_add_u32 {v(vT3)}, {v(vP1)}, 1, {s(sScr)}")
    A(f"v_add_u32 {v(vP0)}, 6400, {v(vRow)}")
    A(f"s_mov_b64 exec, {s(sA0,2)}")
    A(f"ds_write_b16 {v(vT1)}, {v(vRow)} offset:1024")
    A(f"ds_write_b32 {v(vT0)}, {v(vM0)}")
    A(f"s_mov_b64 exec, {s(sA1,2)}")
    A(f"ds_write_b16 {v(vT3)}, {v(vP0)} offset:1024")
    A(f"ds_write_b32 {v(vT2)}, {v(vM1)} offset:448")
    A("s_mov_b64 exec, -1")
    for q in range(6):
        A(f"ds_read_u16 {v(vRq[q])}, {v(vRA)} offset:{1024+16*q}")
    A(f"s_add_u32 {s(sT)}, {s(sN0)}, {s(sN1)}")
    A(f"s_add_u32 {s(sT)}, {s(sT)}, 15")
    A(f"s_lshr_b32 {s(sT)}, {s(sT)}, 4")
    A(f"s_max_u32 {s(sT3)}, {s(sT)}, 3")
    A(f"s_sub_u32 {s(sT3)}, {s(sT3)}, 1")
    A(f"s_mov_b32 m0, {s(sHBw)}")
    for q in range(6):
        A(f"s_waitcnt lgkmcnt({5-q})")
        A(f"v_add_u32 {v(vRq[q])}, {v(vRq[q])}, {v(vHC)}")
        A(f"buffer_load_dwordx4 {v(vRq[q])}, {s(sSRD,4)}, {s(sHo)} offen nt lds")
        if q < 5:
            A("s_add_u32 m0, m0, 1024")
    A(f"v_add_u32 {v(vRA)}, {1024+96}, {v(vRA)}")
    A("s_waitcnt vmcnt(18)")
    for i, tl in enumerate((vTl0, vTl1)):
        A(f"v_mul_f32 {v(tl)}, {f32bits(KAPPA):#x}, {v(tl)}")
        A(f"v_cvt_pk_bf16_f32 {v(vTh[i])}, {v(tl)}, {v(tl)}")
        A(f"v_lshlrev_b32 {v(vT0)}, 16, {v(vTh[i])}")
        A(f"v_sub_f32 {v(vT0)}, {v(tl)}, {v(vT0)}")
        A(f"v_cvt_pk_bf16_f32 {v(vTlo[i])}, {v(vT0)}, {v(vT0)}")
    A("s_waitcnt vmcnt(14)")
    A("s_barrier")
    for t0 in range(2):
        for mi, mat in enumerate((0, 2)):
            for hh in range(2):
                A(f"ds_read_b64_tr_b16 {v(vBT+(t0*2+mi)*4+2*hh,2)}, {v(vWtw[t0^hh])} offset:{mat*8192+hh*1024}")
    for mi, mat in enumerate((1, 2)):
        for ks in range(2):
            for hh in range(2):
                A(f"ds_read_b64_tr_b16 {v(vBT+16+(mi*2+ks)*4+2*hh,2)}, {v(vCtr[hh])} offset:{mat*8192+ks*4096}")
    A("s_waitcnt lgkmcnt(8)")
    vPD = vX
    for t0 in range(2):
        A(f"v_mfma_f32_16x16x32_bf16 {v(vPD+4*t0,4)}, {v(vKI,4)}, {v(vBT+(t0*2)*4,4)}, 0")
        A(f"v_mfma_f32_16x16x32_bf16 {v(vPD+4*t0,4)}, {v(vKI,4)}, {v(vBT+(t0*2+1)*4,4)}, {v(vPD+4*t0,4)}")
    A("s_waitcnt vmcnt(6) lgkmcnt(0)")
    for mi in range(2):
        A(f"v_mfma_f32_16x16x32_bf16 {v(vPD+8+4*mi,4)}, {v(vBT+16+(mi*2)*4,4)}, {v(vTtB,4)}, 0")
        A(f"v_mfma_f32_16x16x32_bf16 {v(vPD+8+4*mi,4)}, {v(vBT+16+(mi*2+1)*4,4)}, {v(vTtB+4,4)}, {v(vPD+8+4*mi,4)}")
    n = 0
    for tau in range(4):
        for jt in range(4):
            for hh in range(2):
                A(f"ds_read_b64_tr_b16 {v(vWd+(tau*4+jt)*4+2*hh,2)}, {v(vWtr[(tau&1)^hh])} offset:{3*8192+(tau>>1)*4096+hh*1024+jt*256}")
                n += 1
                if n == 4:
                    A(f"s_lshr_b32 {s(sT0)}, {s(sW)}, 2")
                    A(f"s_lshl_b32 {s(sT0)}, {s(sT0)}, 13")
                    A(f"s_and_b32 {s(sT1)}, {s(sW)}, 3")
                    A(f"s_lshl_b32 {s(sT1)}, {s(sT1)}, 10")
                    A(f"s_add_u32 {s(sT0)}, {s(sT0)}, {s(sT1)}")
                    A(f"v_add_u32 {v(vT0)}, {s(sT0)}, {v(vWR)}")
                    A(f"ds_write_b128 {v(vT0)}, {v(vPD,4)}")
                    A(f"ds_write_b128 {v(vT0)}, {v(vPD+4,4)} offset:4096")
                    A(f"v_lshlrev_b32 {v(vB1f)}, 16, {v(vB1)}")
                    A(f"v_and_b32 {v(vB1f+1)}, 0xffff0000, {v(vB1)}")
                    A(f"v_lshlrev_b32 {v(vB1f+2)}, 16, {v(vB1+1)}")
                    A(f"v_and_b32 {v(vB1f+3)}, 0xffff0000, {v(vB1+1)}")
                    for r in range(4):
                        A(f"v_sub_f32 {v(vPD+8+r)}, {v(vPD+8+r)}, {v(vPD+12+r)}")
                    for r in range(4):
                        A(f"v_add_f32 {v(vPD+8+r)}, {v(vPD+8+r)}, {v(vB1f+r)}")
                    for r in range(4):
                        A(f"v_mul_f32 {v(vPD+8+r)}, {f32bits(KAPPA):#x}, {v(vPD+8+r)}")
                    A(f"s_lshr_b32 {s(sT1)}, {s(sT1)}, 4")
                    A(f"s_add_u32 {s(sT1)}, {s(sT1)}, {CB}")
                    A(f"v_lshl_add_u32 {v(vT0)}, {v(vG)}, 4, {s(sT1)}")
                    A(f"v_lshl_add_u32 {v(vT0)}, {v(vN)}, 8, {v(vT0)}")
                    A(f"ds_write_b128 {v(vT0)}, {v(vPD+8,4)}")
                    for r in range(4):
                        A(f"v_mov_b32 {v(vB2C+r)}, {v(vB2)}")
    A(f"s_mov_b32 {s(sTi)}, 0")
    A(f"s_mov_b32 {s(sRel)}, {s(sN0)}")
    A(f"s_mov_b32 {s(sCur)}, 0")
    A(f"s_mov_b32 {s(sNeed)}, 1")
    A(f"s_mov_b32 {s(sCont)}, 0")
    A(f"s_mov_b32 {s(sTB)}, {s(sHBw)}")
    A(f"s_add_u32 {s(sPB)}, {s(sHBw)}, {3*2048}")
    A("s_waitcnt lgkmcnt(0)")
    A("s_barrier")
    A(f"s_cmp_eq_u32 {s(sT)}, 0")
    g.branch("s_cbranch_scc1 L_epi")

    g.label("L_pass")
    A(f"s_cmp_eq_u32 {s(sNeed)}, 0")
    g.branch("s_cbranch_scc1 L_nobuild")
    A(f"ds_write_b16 {v(vDW)}, {v(vTh[0])}")
    A(f"ds_write_b16 {v(vDW)}, {v(vTlo[0])} offset:1024")
    for tau in range(4):
        A(f"ds_read_b128 {v(vDA+4*tau,4)}, {v(vDR)} offset:{tau*256}")
    for ks in range(2):
        for jt in range(4):
            for t0 in range(2):
                A(f"ds_read_b128 {v(vBT+(jt*2+t0)*4,4)}, {v(vWR)} offset:{((2*ks+t0)*4+jt)*1024}")
        for jt in range(4):
            A(f"s_waitcnt lgkmcnt({6-2*jt})")
            for t0 in range(2):
                tau = 2 * ks + t0
                d = vBT + (jt * 2 + t0) * 4
                A(f"v_mfma_f32_16x16x32_bf16 {v(d,4)}, {v(vDA+4*tau,4)}, {v(vWd+(tau*4+jt)*4,4)}, {v(d,4)}")
        for jt in range(4):
            for t0 in range(2):
                d = vBT + (jt * 2 + t0) * 4
                o = vWeff + (jt * 2 + ks) * 4 + 2 * t0
                A(f"v_cvt_pk_bf16_f32 {v(o)}, {v(d)}, {v(d+1)}")
                A(f"v_cvt_pk_bf16_f32 {v(o+1)}, {v(d+2)}, {v(d+3)}")
    A(f"s_mov_b32 {s(sNeed)}, 0")
    g.label("L_nobuild")
    A(f"v_cmp_gt_i32 vcc, {s(sRel)}, {v(vN)}")
    A(f"v_add_u32 {v(vBA)}, {s(sTB)}, {v(vBoff)}")
    A(f"s_cmp_lg_u32 {s(sCont)}, 0")
    g.branch("s_cbranch_scc1 L_noinit")
    A(f"v_cndmask_b32 {v(vCA)}, {v(vC1)}, {v(vC0)}, vcc")
    for jt in range(4):
        A(f"ds_read_b128 {v(vD1+4*jt,4)}, {v(vCA)} offset:{jt*64}")
    A(f"s_sub_u32 {s(sRem)}, {s(sT3)}, {s(sTi)}")
    A("s_waitcnt vmcnt(4)")
    A(f"s_cmp_ge_u32 {s(sRem)}, 2")
    g.branch("s_cbranch_scc1 L_noinit")
    A("s_waitcnt vmcnt(2)")
    A(f"s_cmp_eq_u32 {s(sRem)}, 1")
    g.branch("s_cbranch_scc1 L_noinit")
    A("s_waitcnt vmcnt(0)")
    g.label("L_noinit")
    A(f"s_not_b64 {s(sTmp2,2)}, vcc")
    A(f"s_cmp_eq_u32 {s(sCur)}, 0")
    A(f"s_cselect_b64 {s(sVal,2)}, vcc, {s(sTmp2,2)}")
    A(f"v_cndmask_b32 {v(vBA)}, {v(vZoff)}, {v(vBA)}, {s(sVal,2)}")
    A(f"ds_read_b128 {v(vHB,4)}, {v(vBA)}")
    A(f"ds_read_b128 {v(vHB+4,4)}, {v(vBA)} offset:512")
    A("s_waitcnt lgkmcnt(0)")
    for jt in range(4):
        for ks in range(2):
            A(f"v_mfma_f32_16x16x32_bf16 {v(vD1+4*jt,4)}, {v(vWeff+(jt*2+ks)*4,4)}, {v(vHB+4*ks,4)}, {v(vD1+4*jt,4)}")
    A(f"s_mov_b32 {s(sCont)}, 0")
    A(f"s_cmp_lg_u32 {s(sCur)}, 0")
    A("s_cbranch_scc1 L_fin")
    A(f"s_cmp_gt_i32 {s(sRel)}, 16")
    A("s_cbranch_scc1 L_fin")
    A(f"s_mov_b32 {s(sCur)}, 1")
    A(f"s_mov_b32 {s(sNeed)}, 1")
    A(f"v_mov_b32 {v(vTh[0])}, {v(vTh[1])}")
    A(f"v_mov_b32 {v(vTlo[0])}, {v(vTlo[1])}")
    A(f"s_cmp_eq_u32 {s(sRel)}, 16")
    A("s_cbranch_scc1 L_fin")
    A(f"s_mov_b32 {s(sCont)}, 1")
    g.branch("s_branch L_pass")
    g.raw("L_fin:")
    g.hist = [i for i in g.hist if i.kind == "mfma"][-8:]
    A(f"v_add_u32 {v(vTRA)}, {s(sTB)}, {v(vTRoff)}")
    for dt in range(4):
        A(f"ds_read_b64_tr_b16 {v(vTRr+2*dt,2)}, {v(vTRA)} offset:{dt*256}")
    A(f"ds_read_b128 {v(vM,4)}, {v(vMA)}")
    A(f"ds_read_u16 {v(vR[0])}, {v(vRA)}")
    A(f"ds_read_u16 {v(vR[1])}, {v(vRA)} offset:16")
    for jt in range(4):
        d = vD1 + 4 * jt
        for r in range(4):
            A(f"v_exp_f32 {v(d+r)}, {v(d+r)}")
        for r in range(4):
            A(f"v_add_f32 {v(d+r)}, 1.0, {v(d+r)}")
        for r in range(4):
            A(f"v_rcp_f32 {v(d+r)}, {v(d+r)}")
        if jt > 0:
            p = vD1 + 4 * (jt - 1)
            A(f"v_cvt_pk_bf16_f32 {v(vH+2*(jt-1))}, {v(p)}, {v(p+1)}")
            A(f"v_cvt_pk_bf16_f32 {v(vH+2*(jt-1)+1)}, {v(p+2)}, {v(p+3)}")
        if jt == 2:
            A(f"v_mfma_f32_16x16x32_bf16 {v(vD2,4)}, {v(vH,4)}, {v(vW2,4)}, {v(vB2C,4)}")
    p = vD1 + 12
    A(f"v_cvt_pk_bf16_f32 {v(vH+6)}, {v(p)}, {v(p+1)}")
    A(f"v_cvt_pk_bf16_f32 {v(vH+7)}, {v(p+2)}, {v(p+3)}")
    A(f"s_add_u32 {s(sT0)}, {s(sTi)}, 3")
    A(f"v_add_u32 {v(vMA)}, 64, {v(vMA)}")
    A(f"v_mfma_f32_16x16x32_bf16 {v(vD2,4)}, {v(vH+4,4)}, {v(vW2+4,4)}, {v(vD2,4)}")
    A("s_waitcnt lgkmcnt(0)")
    A(f"s_cmp_ge_u32 {s(sT0)}, {s(sT)}")
    A("s_cbranch_scc1 L_nopf")
    A(f"s_mov_b32 m0, {s(sPB)}")
    A(f"v_add_u32 {v(vR[0])}, {v(vR[0])}, {v(vHC)}")
    A(f"v_add_u32 {v(vR[1])}, {v(vR[1])}, {v(vHC)}")
    A(f"buffer_load_dwordx4 {v(vR[0])}, {s(sSRD,4)}, {s(sHo)} offen nt lds")
    A("s_add_u32 m0, m0, 1024")
    A(f"v_add_u32 {v(vRA)}, 32, {v(vRA)}")
    A(f"buffer_load_dwordx4 {v(vR[1])}, {s(sSRD,4)}, {s(sHo)} offen nt lds")
    A(f"s_add_u32 {s(sPB)}, {s(sPB)}, 2048")
    A(f"s_cmp_eq_u32 {s(sT0)}, 4")
    A(f"s_cselect_b32 {s(sPB)}, {s(sOVw)}, {s(sPB)}")
    g.raw("L_nopf:")
    g.hist = [i for i in g.hist if i.kind == "mfma"][-1:]
    A(f"s_add_u32 {s(sTi)}, {s(sTi)}, 1")
    A(f"s_sub_u32 {s(sRel)}, {s(sRel)}, 16")
    A(f"s_add_u32 {s(sTB)}, {s(sTB)}, 2048")
    A(f"s_cmp_eq_u32 {s(sTi)}, 5")
    A(f"s_cselect_b32 {s(sTB)}, {s(sOVw)}, {s(sTB)}")
    for r in range(4):
        A(f"v_mul_f32 {v(vM+r)}, {v(vD2+r)}, {v(vM+r)}")
    A(f"v_cvt_pk_bf16_f32 {v(vS)}, {v(vM)}, {v(vM+1)}")
    A(f"v_cvt_pk_bf16_f32 {v(vS+1)}, {v(vM+2)}, {v(vM+3)}")
    A(f"s_cmp_lt_u32 {s(sTi)}, {s(sT)}")
    for dt in range(4):
        A(f"v_mfma_f32_16x16x16_bf16 {v(vD3+4*dt,4)}, {v(vTRr+2*dt,2)}, {v(vS,2)}, {v(vD3+4*dt,4)}")
    A("s_cbranch_scc1 L_pass")

    g.label("L_epi")
    vO = vBT
    for dt in range(4):
        A(f"v_cvt_pk_bf16_f32 {v(vO+2*dt)}, {v(vD3+4*dt)}, {v(vD3+4*dt+1)}")
        A(f"v_cvt_pk_bf16_f32 {v(vO+2*dt+1)}, {v(vD3+4*dt+2)}, {v(vD3+4*dt+3)}")
    A("s_mov_b32 exec_lo, 0x01010101")
    A("s_mov_b32 exec_hi, 0x01010101")
    for dt in range(4):
        A(f"global_store_dwordx2 {v(vOA)}, {v(vO+2*dt,2)}, {s(sOb,2)} offset:{dt*32}")
    g.raw("L_end:")
    g.raw("    s_endpgm")
    nv = (g.nv + 7) // 8 * 8
    assert nv <= 256, g.nv
    g.raw('.section .rodata,"a"')
    g.raw(".p2align 6")
    g.raw(f".amdhsa_kernel {KN}")
    g.raw(f"  .amdhsa_next_free_vgpr {nv}")
    g.raw(f"  .amdhsa_next_free_sgpr {max(g.ns, 32)}")
    g.raw(f"  .amdhsa_accum_offset {nv}")
    g.raw("  .amdhsa_group_segment_fixed_size 0")
    g.raw("  .amdhsa_kernarg_size 80")
    g.raw("  .amdhsa_user_sgpr_count 2")
    g.raw("  .amdhsa_user_sgpr_kernarg_segment_ptr 1")
    g.raw("  .amdhsa_system_sgpr_workgroup_id_x 1")
    g.raw("  .amdhsa_float_denorm_mode_32 3")
    g.raw("  .amdhsa_float_denorm_mode_16_64 3")
    g.raw(".end_amdhsa_kernel")
    sys.stderr.write(f"vgprs {g.nv} sgprs {g.ns} nops {g.nops} lds {LDS_BYTES}\n")
    return g.text()


if __name__ == "__main__":
    out = sys.argv[1] if len(sys.argv) > 1 else "standalone__sequential_behavior_din__recsys.s"
    open(out, "w").write(gen())
```

```python
import re

TRANS = ("v_exp_f32", "v_log_f32", "v_rcp_f32", "v_rsq_f32", "v_sqrt_f32", "v_sin_f32", "v_cos_f32",
         "v_exp_f16", "v_rcp_f16", "v_rcp_iflag_f32")

_REG = re.compile(r"\b([vsa])\[(\d+):(\d+)\]|\b([vsa])(\d+)\b|\b(vcc|exec|m0|scc)(_lo|_hi)?\b")


def regs_of(tok):
    out = []
    for m in _REG.finditer(tok):
        if m.group(1):
            out += [(m.group(1), i) for i in range(int(m.group(2)), int(m.group(3)) + 1)]
        elif m.group(4):
            out.append((m.group(4), int(m.group(5))))
        else:
            out.append((m.group(6), 0))
    return out


class Ins:
    __slots__ = ("text", "op", "kind", "w", "r", "srcc", "ab", "states", "passes")

    def __init__(self, text):
        self.text = text
        t = text.split(";")[0].strip()
        parts = t.split(None, 1)
        self.op = parts[0]
        ops = [o.strip() for o in parts[1].split(",")] if len(parts) > 1 else []
        if ops:
            last = ops[-1].split()
            ops[-1] = last[0] if last else ""
        op = self.op
        self.w, self.r, self.srcc, self.ab = [], [], [], []
        self.states = 1
        self.passes = 0
        if op == "s_nop":
            self.kind = "nop"
            self.states = int(ops[0], 0) + 1
        elif op.startswith("v_mfma"):
            self.kind = "mfma"
            self.passes = 8 if "32x32" in op else 4
            self.w = regs_of(ops[0])
            self.ab = regs_of(ops[1]) + regs_of(ops[2])
            self.srcc = regs_of(ops[3])
            self.r = self.ab + self.srcc
        elif op.startswith("v_"):
            self.kind = "valu"
            self.w = regs_of(ops[0])
            self.r = [x for o in ops[1:] for x in regs_of(o)]
            if op.startswith("v_cndmask") and len(ops) == 3:
                self.r.append(("vcc", 0))
            if op.startswith(("v_fmac", "v_permlane", "v_dot2c")) or "d16" in op or "_sdwa" in op:
                self.r += self.w
            if op.startswith("v_permlane"):
                self.w += regs_of(ops[1])
            if op.startswith(("v_add_co", "v_addc_co", "v_sub_co")):
                self.w += regs_of(ops[1])
        elif op.startswith("ds_"):
            self.kind = "ds"
            if op.startswith(("ds_write", "ds_add", "ds_or")):
                self.r = [x for o in ops for x in regs_of(o)]
            else:
                self.w = regs_of(ops[0])
                self.r = [x for o in ops[1:] for x in regs_of(o)]
        elif op.startswith(("global_", "buffer_")):
            self.kind = "vmem"
            if "store" in op or "_lds_" in op or " lds" in t:
                self.r = [x for o in ops for x in regs_of(o)]
                if "_lds_" in op or " lds" in t:
                    self.r.append(("m0", 0))
            else:
                self.w = regs_of(ops[0])
                self.r = [x for o in ops[1:] for x in regs_of(o)]
        elif op.startswith("s_"):
            self.kind = "salu"
            if op.startswith(("s_cmp", "s_waitcnt", "s_barrier", "s_branch", "s_cbranch", "s_endpgm", "s_setprio", "s_sleep")):
                self.r = [x for o in ops for x in regs_of(o)] if op.startswith("s_cmp") else []
            else:
                self.w = regs_of(ops[0]) if ops else []
                self.r = [x for o in ops[1:] for x in regs_of(o)]
        else:
            raise ValueError("unknown instr " + text)


def _ov(a, b):
    return bool(set(a) & set(b))


def required(p, i):
    need = 0
    xd = {4: 8, 8: 12}
    if p.kind == "valu":
        vw = [x for x in p.w if x[0] in "va"]
        sw = [x for x in p.w if x[0] in ("s", "vcc")]
        if i is None:
            if vw:
                need = max(need, 2)
            if sw:
                need = max(need, 5)
            return need
        if i.kind == "mfma" and _ov(vw, i.r):
            need = max(need, 2)
        if p.op.startswith(TRANS) and i.kind == "valu" and not i.op.startswith(TRANS) and _ov(vw, i.r):
            need = max(need, 1)
        if i.op.startswith(("v_readfirstlane", "v_readlane")) and _ov(vw, i.r):
            need = max(need, 1)
        if (i.op.startswith("v_permlane") or "dpp" in i.text) and _ov(vw, i.r):
            need = max(need, 2)
        if ("_sdwa" in p.op or "op_sel" in p.text) and i.kind == "valu" and (_ov(vw, i.r) or _ov(vw, i.w)):
            need = max(need, 1)
        if sw and _ov(sw, i.r):
            if i.kind == "valu":
                need = max(need, 4 if i.op.startswith(("v_readlane", "v_writelane")) else 2)
            elif i.kind == "vmem":
                need = max(need, 5)
            elif i.kind == "salu":
                need = max(need, 1)
    elif p.kind == "mfma":
        n = xd[p.passes]
        if i is None:
            return n
        if i.kind == "mfma":
            if _ov(p.w, i.ab):
                need = max(need, n)
            if _ov(p.w, i.srcc):
                if not (p.w == i.srcc and p.passes == i.passes):
                    need = max(need, n - 2)
            elif _ov(p.w, i.w):
                need = max(need, n - 2)
        elif i.kind in ("valu", "ds", "vmem"):
            if _ov(p.w, i.r) or _ov(p.w, i.w):
                need = max(need, n)
            if i.kind == "valu" and _ov(p.srcc, i.w):
                need = max(need, {4: 3, 8: 7}[p.passes])
    elif p.kind == "salu":
        if ("m0", 0) in p.w:
            if i is None or (i.kind == "vmem" and ("m0", 0) in i.r):
                need = max(need, 1)
    elif p.kind == "vmem":
        if "store" in p.op and ("x4" in p.op or "x3" in p.op):
            if i is None or _ov([x for x in p.r if x[0] == "v"], i.w):
                need = max(need, 2)
    return need


class Gen:
    def __init__(self):
        self.lines = []
        self.hist = []
        self.nv = 0
        self.ns = 0
        self.names = {}
        self.nops = 0
        self.nds = 0

    def vreg(self, n=1, align=None, name=None):
        a = align or (1 if n == 1 else 2 if n == 2 else 4)
        self.nv = (self.nv + a - 1) // a * a
        b = self.nv
        self.nv += n
        return b

    def sreg(self, n=1, align=None):
        a = align or (1 if n == 1 else 2 if n == 2 else 4)
        self.ns = (self.ns + a - 1) // a * a
        b = self.ns
        self.ns += n
        return b

    def raw(self, s):
        self.lines.append(s)

    def comment(self, s):
        self.lines.append("    ; " + s)

    def _pad(self, ins):
        dist = 0
        need = 0
        for p in reversed(self.hist):
            rq = required(p, ins)
            if rq > dist:
                need = max(need, rq - dist)
            dist += p.states
            if dist > 24:
                break
        if need:
            n = Ins(f"s_nop {need - 1}")
            self.lines.append(f"    s_nop {need - 1}")
            self.hist.append(n)
            self.nops += need

    def __call__(self, text):
        ins = Ins(text)
        self._pad(ins)
        self.lines.append("    " + text)
        self.hist.append(ins)
        self.hist = self.hist[-40:]
        if ins.kind == "ds":
            self.nds += 1

    def mark(self):
        return self.nds

    def wait_ds(self, tag):
        n = self.nds - tag
        self(f"s_waitcnt lgkmcnt({min(n, 15)})")

    def flush(self):
        self._pad(None)

    def label(self, name):
        self.flush()
        self.lines.append(name + ":")

    def branch(self, text):
        self.flush()
        self(text)

    def text(self):
        return "\n".join(self.lines) + "\n"


def v(b, n=1):
    return f"v{b}" if n == 1 else f"v[{b}:{b + n - 1}]"


def s(b, n=1):
    return f"s{b}" if n == 1 else f"s[{b}:{b + n - 1}]"
```

```python
import sys, struct
sys.path.insert(0, "tools")
from asmgen import Gen, v, s

KN = "standalone__sequential_behavior_din__recsys_kernel"


def f32bits(x):
    return struct.unpack("<I", struct.pack("<f", x))[0]


def bf16_rne(x):
    u = f32bits(x)
    return ((u + 0x7FFF + ((u >> 16) & 1)) >> 16) & 0xFFFF


def bf16_to_f(h):
    return struct.unpack("<f", struct.pack("<I", h << 16))[0]


KAPPA = -1.4426950408889634
K1 = bf16_rne(KAPPA)
K2 = bf16_rne(KAPPA - bf16_to_f(K1))

HB = 0
PB = 81920
DBW = 114688
WB = 122880
CB = 139264
ZB = 147456
MB = 148480
LDS_BYTES = MB + 8 * 1280


def gen(debug=False):
    g = Gen()
    A = g
    hdr = open("standalone__sequential_behavior_din__recsys.s.ref").read().split("\n")
    for ln in hdr:
        if ln.startswith("; @launch"):
            break
        g.raw(ln)
    g.raw(f"; @launch grid=(256,1,1) block=(512,1,1) lds={LDS_BYTES}")
    g.raw('.amdgcn_target "amdgcn-amd-amdhsa--gfx950"')
    g.raw(".text")
    g.raw(f".globl {KN}")
    g.raw(".p2align 8")
    g.raw(f".type {KN},@function")
    g.raw(f"{KN}:")

    g.ns = 4
    sP = g.sreg(16)
    sTG, sHI, sMK, sW1, sB1, sW2, sB2, sOUT = [sP + 2 * i for i in range(8)]
    sSRD = g.sreg(4)
    sW = g.sreg(); sB0 = g.sreg(); sH = g.sreg(); sJ = g.sreg()
    sT0 = g.sreg(); sT1 = g.sreg(); sHo = g.sreg(); sB2v = g.sreg()
    sMb = g.sreg(2); sTb = g.sreg(2); sTtb = g.sreg(2); sWb = g.sreg(2); sB1b = g.sreg(2); sOb = g.sreg(2)
    sA0 = g.sreg(2); sA1 = g.sreg(2); sTmp2 = g.sreg(2)
    sN0 = g.sreg(); sN1 = g.sreg(); sT = g.sreg(); sT3 = g.sreg()
    sScr = g.sreg(); sHBw = g.sreg(); sOVw = g.sreg()
    sTi = g.sreg(); sRel = g.sreg(); sTB = g.sreg(); sPB = g.sreg(); sRem = g.sreg()

    g.nv = 1
    vLane = g.vreg(); vN = g.vreg(); vG = g.vreg(); vHC = g.vreg()
    vT0 = g.vreg(); vT1 = g.vreg(); vT2 = g.vreg(); vT3 = g.vreg()
    vC0 = g.vreg(); vC1 = g.vreg(); vCA = g.vreg()
    vBoff = g.vreg(); vZoff = g.vreg(); vBA = g.vreg(); vBA1 = g.vreg()
    vTRoff = g.vreg(); vTRA = g.vreg()
    vMA = g.vreg(); vRA = g.vreg()
    vR = [g.vreg() for _ in range(2)]
    vOA = g.vreg()
    vDR = [g.vreg(), g.vreg()]
    vRq = [g.vreg() for q in range(6)]
    vG8k = g.vreg()
    vWeff = [g.vreg(32), g.vreg(32)]
    vW2 = g.vreg(8)
    vD3 = g.vreg(16)
    vB2C = g.vreg(4)
    vD1 = g.vreg(16)
    vHB = g.vreg(8); vHB1 = g.vreg(8); vTRr = g.vreg(8); vH = g.vreg(8)
    vD2 = g.vreg(4); vM = g.vreg(4); vS = g.vreg(2)
    w0 = vD1
    vP = g.vreg(64)
    aWR, aWd = vCA, [vBA, vBA1]
    vZ4 = vP
    vM0 = vP + 4; vM1 = vP + 5; vTl = [vP + 6, vP + 7]
    vL2 = vP + 9; vL16 = vP + 10; vS8 = vP + 11; vWo = vP + 12; vTt = vP + 13; vG8 = vP + 14; vRow = vP + 15
    vTtB = vP + 16
    vB1 = vP + 20
    vP0 = vP + 22; vP1 = vP + 23
    vKI = vP + 32
    vWtr = [vP + 36, vP + 37]; vCtr = [vP + 38, vP + 39]; vDW = vP + 40
    vTh = [vP + 45, vP + 46]; vTlo = [vP + 47, vP + 48]
    vU0 = vP + 41; vU1 = vP + 42; vU2 = vP + 43

    NST = 8
    if debug:
        sST = g.sreg(2 * NST, 4); sRT = g.sreg(4, 4); sWS = g.sreg(2)
    stamp_i = [0]

    def stamp(wait=True):
        if debug:
            A(f"s_memtime {s(sST+2*stamp_i[0],2)}")
            stamp_i[0] += 1

    if debug:
        A(f"s_memrealtime {s(sRT,2)}")
        A(f"s_load_dwordx2 {s(sWS,2)}, s[0:1], 72")
    stamp()
    A("s_cmp_ge_u32 s2, 256")
    A("s_cbranch_scc1 L_end")
    A(f"s_load_dwordx16 {s(sP,16)}, s[0:1], 0")
    A(f"v_lshrrev_b32 {v(vT0)}, 6, v0")
    A(f"v_and_b32 {v(vLane)}, 63, v0")
    A(f"v_readfirstlane_b32 {s(sW)}, {v(vT0)}")
    A(f"v_and_b32 {v(vN)}, 15, v0")
    A(f"v_lshrrev_b32 {v(vG)}, 4, {v(vLane)}")
    A(f"v_lshlrev_b32 {v(vL2)}, 1, {v(vLane)}")
    A(f"v_mov_b32 {v(vM0)}, 0")
    A(f"v_mov_b32 {v(vM1)}, 0")
    A(f"v_and_b32 {v(vT2)}, 1, {v(vLane)}")
    A(f"v_lshlrev_b32 {v(vT2)}, 4, {v(vT2)}")
    A(f"v_lshl_add_u32 {v(vHC)}, {v(vG)}, 5, {v(vT2)}")
    A(f"v_lshrrev_b32 {v(vS8)}, 1, {v(vN)}")
    A(f"s_lshr_b32 {s(sT0)}, {s(sW)}, 1")
    A(f"s_xor_b32 {s(sT0)}, {s(sT0)}, {s(sW)}")
    A(f"s_and_b32 {s(sT0)}, {s(sT0)}, 1")
    A(f"s_lshl_b32 {s(sT0)}, {s(sT0)}, 2")
    A(f"v_xor_b32 {v(vT1)}, {s(sT0)}, {v(vS8)}")
    A(f"v_lshl_add_u32 {v(vWo)}, {v(vT1)}, 7, {v(vHC)}")
    A(f"s_lshl_b32 {s(sB0)}, s2, 4")
    A(f"s_lshl_b32 {s(sT0)}, {s(sW)}, 1")
    A(f"s_add_u32 {s(sB0)}, {s(sB0)}, {s(sT0)}")
    A(f"s_lshr_b32 {s(sH)}, {s(sW)}, 2")
    A(f"s_and_b32 {s(sJ)}, {s(sW)}, 3")
    A(f"s_lshl_b32 {s(sT1)}, {s(sW)}, 10")
    A(f"s_add_u32 m0, {s(sT1)}, {PB}")
    A(f"s_mul_i32 {s(sT0)}, {s(sB0)}, 100")
    A(f"s_lshl_b32 {s(sHo)}, {s(sJ)}, 5")
    A(f"v_lshlrev_b32 {v(vG8)}, 3, {v(vG)}")
    A(f"v_lshlrev_b32 {v(vT0)}, 4, {v(vG)}")
    A(f"v_lshl_add_u32 {v(vTt)}, {v(vN)}, 7, {v(vT0)}")
    for r in (vZ4, vZ4 + 1, vZ4 + 2, vZ4 + 3, vTl[0], vTl[1]):
        A(f"v_mov_b32 {v(r)}, 0")
    A("s_waitcnt lgkmcnt(0)")
    stamp()
    A(f"s_add_u32 {s(sMb)}, {s(sMK)}, {s(sT0)}")
    A(f"s_addc_u32 {s(sMb+1)}, {s(sMK+1)}, 0")
    A("s_mov_b32 exec_hi, 0x3ffff")
    A(f"global_load_short_d16_hi {v(vM0)}, {v(vL2)}, {s(sMb,2)}")
    A(f"global_load_short_d16_hi {v(vM1)}, {v(vL2)}, {s(sMb,2)} offset:100")
    A("s_mov_b32 exec_hi, -1")
    A(f"s_add_u32 {s(sWb)}, {s(sW1)}, {s(sT1)}")
    A(f"s_addc_u32 {s(sWb+1)}, {s(sW1+1)}, 0")
    for mat in range(4):
        A(f"global_load_lds_dwordx4 {v(vWo)}, {s(sWb,2)}")
        if mat < 3:
            A(f"s_add_u32 {s(sWb)}, {s(sWb)}, 8192")
            A(f"s_addc_u32 {s(sWb+1)}, {s(sWb+1)}, 0")
            A(f"s_add_u32 m0, m0, {8192 if mat < 2 else 16384}")
    A(f"s_lshl_b32 {s(sT1)}, {s(sB0)}, 7")
    A(f"s_add_u32 {s(sTb)}, {s(sTG)}, {s(sT1)}")
    A(f"s_addc_u32 {s(sTb+1)}, {s(sTG+1)}, 0")
    A(f"global_load_short_d16_hi {v(vTl[0])}, {v(vL2)}, {s(sTb,2)}")
    A(f"global_load_short_d16_hi {v(vTl[1])}, {v(vL2)}, {s(sTb,2)} offset:128")
    A(f"s_lshl_b32 {s(sT0)}, s2, 11")
    A(f"s_lshl_b32 {s(sTtb)}, {s(sH)}, 6")
    A(f"s_add_u32 {s(sT0)}, {s(sT0)}, {s(sTtb)}")
    A(f"s_add_u32 {s(sTtb)}, {s(sTG)}, {s(sT0)}")
    A(f"s_addc_u32 {s(sTtb+1)}, {s(sTG+1)}, 0")
    A(f"global_load_dwordx4 {v(vTtB,4)}, {v(vTt)}, {s(sTtb,2)}")
    A(f"s_add_u32 {s(sB1b)}, {s(sB1)}, {s(sHo)}")
    A(f"s_addc_u32 {s(sB1b+1)}, {s(sB1+1)}, 0")
    A(f"global_load_dwordx2 {v(vB1,2)}, {v(vG8)}, {s(sB1b,2)}")
    NV1 = 10
    A(f"s_load_dword {s(sB2v)}, {s(sB2,2)}, 0")
    A(f"s_mul_i32 {s(sHo)}, {s(sB0)}, 6400")
    A(f"s_mov_b32 {s(sSRD)}, {s(sHI)}")
    A(f"s_and_b32 {s(sSRD+1)}, {s(sHI+1)}, 0xffff")
    A(f"s_mov_b32 {s(sSRD+2)}, 26214400")
    A(f"s_mov_b32 {s(sSRD+3)}, 0x00020000")
    A(f"s_add_u32 {s(sOb)}, {s(sOUT)}, {s(sT1)}")
    A(f"s_addc_u32 {s(sOb+1)}, {s(sOUT+1)}, 0")
    A(f"s_mul_i32 {s(sScr)}, {s(sW)}, 1280")
    A(f"s_add_u32 {s(sScr)}, {s(sScr)}, {MB}")
    A(f"s_mul_i32 {s(sHBw)}, {s(sW)}, 10240")
    A(f"s_lshl_b32 {s(sOVw)}, {s(sW)}, 12")
    A(f"s_add_u32 {s(sOVw)}, {s(sOVw)}, {PB}")
    A(f"v_lshlrev_b32 {v(vL16)}, 4, {v(vLane)}")
    A(f"v_add_u32 {v(vT0)}, {s(sScr)}, {v(vL16)}")
    A(f"ds_write_b128 {v(vT0)}, {v(vZ4,4)}")
    A(f"v_lshl_add_u32 {v(vT1)}, {v(vLane)}, 2, {s(sScr)}")
    A(f"ds_write_b32 {v(vT1)}, {v(vZ4)} offset:1024")
    A(f"v_lshl_add_u32 {v(vRA)}, {v(vS8)}, 1, {s(sScr)}")
    A(f"v_lshlrev_b32 {v(vRow)}, 7, {v(vLane)}")
    A(f"v_add_u32 {v(vT0)}, {s(sHBw)}, {v(vL16)}")
    for k in range(4):
        A(f"ds_write_b128 {v(vT0)}, {v(vZ4,4)} offset:{6144+k*1024}")
    A(f"v_add_u32 {v(vT0)}, {ZB}, {v(vL16)}")
    A(f"ds_write_b128 {v(vT0)}, {v(vZ4,4)}")
    A(f"s_add_u32 {s(sT0)}, {s(sHBw)}, 6144")
    A(f"v_lshrrev_b32 {v(vT0)}, 5, {v(vLane)}")
    A(f"v_bfe_u32 {v(vT1)}, {v(vLane)}, 2, 1")
    A(f"v_lshl_add_u32 {v(vT0)}, {v(vT0)}, 1, {v(vT1)}")
    A(f"v_bfe_u32 {v(vT1)}, {v(vLane)}, 3, 2")
    A(f"v_and_b32 {v(vT2)}, 3, {v(vLane)}")
    A(f"v_lshl_add_u32 {v(vT1)}, {v(vT1)}, 2, {v(vT2)}")
    A(f"v_lshl_add_u32 {v(vDW)}, {v(vT0)}, 8, {s(sT0)}")
    A(f"v_lshl_add_u32 {v(vDW)}, {v(vT1)}, 4, {v(vDW)}")
    A(f"v_and_b32 {v(vT1)}, 7, {v(vT1)}")
    A(f"v_lshl_add_u32 {v(vDW)}, {v(vT1)}, 1, {v(vDW)}")
    A(f"v_lshrrev_b32 {v(vT0)}, 1, {v(vG)}")
    A(f"v_lshl_add_u32 {v(vT0)}, {v(vT0)}, 10, {s(sT0)}")
    A(f"v_lshrrev_b32 {v(vT1)}, 3, {v(vN)}")
    A(f"v_and_b32 {v(vT2)}, 1, {v(vG)}")
    A(f"v_cmp_eq_u32 vcc, {v(vT1)}, {v(vT2)}")
    A(f"v_lshl_add_u32 {v(vDR[0])}, {v(vN)}, 4, {v(vT0)}")
    A(f"v_lshlrev_b32 {v(vT3)}, 4, {v(vN)}")
    A(f"v_add_u32 {v(vT3)}, {ZB}, {v(vT3)}")
    A(f"v_add_u32 {v(vDR[1])}, 2048, {v(vDR[0])}")
    A(f"v_cndmask_b32 {v(vDR[0])}, {v(vT3)}, {v(vDR[0])}, vcc")
    A(f"v_cndmask_b32 {v(vDR[1])}, {v(vT3)}, {v(vDR[1])}, vcc")
    A(f"v_mul_u32_u24 {v(vT3)}, 448, {v(vT1)}")
    A(f"v_lshl_add_u32 {v(vT3)}, {v(vG)}, 4, {v(vT3)}")
    A(f"v_add_u32 {v(vMA)}, {s(sScr)}, {v(vT3)}")
    A(f"v_lshl_add_u32 {v(vOA)}, {v(vT1)}, 7, {v(vG8)}")
    A(f"v_cmp_gt_u32 {s(sTmp2,2)}, 2, {v(vG)}")
    A(f"v_mov_b32 {v(vT0)}, {K2}")
    A(f"v_mov_b32 {v(vT3)}, {K1}")
    A(f"v_cndmask_b32 {v(vT0)}, {v(vT0)}, {v(vT3)}, {s(sTmp2,2)}")
    A(f"v_cndmask_b32 {v(vT0)}, 0, {v(vT0)}, vcc")
    A(f"v_and_b32 {v(vT3)}, 1, {v(vN)}")
    A(f"v_lshlrev_b32 {v(vT3)}, 4, {v(vT3)}")
    A(f"v_lshlrev_b32 {v(vT0)}, {v(vT3)}, {v(vT0)}")
    A(f"v_bfe_u32 {v(vT3)}, {v(vN)}, 1, 2")
    for q in range(4):
        A(f"v_cmp_eq_u32 vcc, {q}, {v(vT3)}")
        A(f"v_cndmask_b32 {v(vKI+q)}, 0, {v(vT0)}, vcc")

    A(f"v_lshlrev_b32 {v(vT1)}, 3, {v(vN)}")
    A(f"v_lshl_add_u32 {v(vT0)}, {v(vT2)}, 11, {v(vT1)}")
    A(f"v_lshl_add_u32 {v(vT0)}, {v(vT2)}, 7, {v(vT0)}")
    A(f"s_lshl_b32 {s(sT0)}, {s(sH)}, 12")
    A(f"s_lshl_b32 {s(sT1)}, {s(sJ)}, 8")
    A(f"s_add_u32 {s(sT0)}, {s(sT0)}, {s(sT1)}")
    A(f"s_add_u32 {s(sT0)}, {s(sT0)}, {PB}")
    A(f"v_add_u32 {v(vWtr[0])}, {s(sT0)}, {v(vT0)}")
    A(f"v_xor_b32 {v(vWtr[1])}, 128, {v(vWtr[0])}")
    A(f"v_add_u32 {v(aWd[0])}, {DBW}, {v(vT0)}")
    A(f"v_xor_b32 {v(aWd[1])}, 128, {v(aWd[0])}")
    A(f"v_lshrrev_b32 {v(vT3)}, 1, {v(vG)}")
    A(f"v_xor_b32 {v(vT0)}, {v(vT3)}, {v(vT2)}")
    A(f"v_lshl_add_u32 {v(vT0)}, {v(vT0)}, 7, {v(vT1)}")
    A(f"v_lshl_add_u32 {v(vT0)}, {v(vG)}, 10, {v(vT0)}")
    A(f"v_add_u32 {v(vCtr[0])}, {s(sT0)}, {v(vT0)}")
    A(f"v_xor_b32 {v(vCtr[1])}, 128, {v(vCtr[0])}")
    A(f"s_waitcnt vmcnt({NV1-6}) lgkmcnt(0)")
    stamp()
    A("s_barrier")
    stamp()
    for t0 in range(2):
        for mi in range(2):
            for hh in range(2):
                A(f"ds_read_b64_tr_b16 {v(w0+(t0*2+mi)*4+2*hh,2)}, {v(vWtr[t0^hh])} offset:{mi*16384+hh*1024}")
    tg1 = g.mark()
    for mi, off in enumerate((8192, 16384)):
        for hh in range(2):
            A(f"ds_read_b64_tr_b16 {v(w0+16+mi*4+2*hh,2)}, {v(vCtr[hh])} offset:{off}")
    tg2 = g.mark()
    A(f"v_cmp_neq_f32 {s(sA0,2)}, 0, {v(vM0)}")
    A(f"v_cmp_neq_f32 {s(sA1,2)}, 0, {v(vM1)}")
    A(f"v_add_u32 {v(vU2)}, 6400, {v(vRow)}")
    A(f"s_bcnt1_i32_b64 {s(sN0)}, {s(sA0,2)}")
    A(f"v_mbcnt_lo_u32_b32 {v(vP0)}, {s(sA0)}, 0")
    A(f"v_mbcnt_hi_u32_b32 {v(vP0)}, {s(sA0+1)}, {v(vP0)}")
    A(f"v_mov_b32 {v(vP1)}, {s(sN0)}")
    A(f"v_mbcnt_lo_u32_b32 {v(vP1)}, {s(sA1)}, {v(vP1)}")
    A(f"v_mbcnt_hi_u32_b32 {v(vP1)}, {s(sA1+1)}, {v(vP1)}")
    A(f"v_lshl_add_u32 {v(vU0)}, {v(vP0)}, 1, {s(sScr)}")
    A(f"v_lshl_add_u32 {v(vU1)}, {v(vP1)}, 1, {s(sScr)}")
    A(f"s_mov_b64 exec, {s(sA0,2)}")
    A(f"ds_write_b16 {v(vU0)}, {v(vRow)} offset:1024")
    A(f"s_mov_b64 exec, {s(sA1,2)}")
    A(f"ds_write_b16 {v(vU1)}, {v(vU2)} offset:1024")
    A("s_mov_b64 exec, -1")
    tags = []
    for q in range(6):
        A(f"ds_read_u16 {v(vRq[q])}, {v(vRA)} offset:{1024+16*q}")
        tags.append(g.mark())
    A(f"v_lshl_add_u32 {v(vU0)}, {v(vP0)}, 2, {s(sScr)}")
    A(f"v_lshl_add_u32 {v(vU1)}, {v(vP1)}, 2, {s(sScr)}")
    A(f"s_bcnt1_i32_b64 {s(sN1)}, {s(sA1,2)}")
    A(f"v_mov_b32 {v(vG8k)}, {v(vG8)}")
    A(f"s_mov_b64 exec, {s(sA0,2)}")
    A(f"ds_write_b32 {v(vU0)}, {v(vM0)}")
    A(f"s_mov_b64 exec, {s(sA1,2)}")
    A(f"ds_write_b32 {v(vU1)}, {v(vM1)} offset:448")
    A("s_mov_b64 exec, -1")
    A(f"v_lshl_add_u32 {v(vTRoff)}, {v(vT2)}, 7, {v(vT1)}")
    A(f"v_lshl_add_u32 {v(vTRoff)}, {v(vT3)}, 10, {v(vTRoff)}")
    A("s_waitcnt vmcnt(0)")
    for i in range(2):
        tl = vTl[i]
        A(f"v_mul_f32 {v(tl)}, {f32bits(KAPPA):#x}, {v(tl)}")
        A(f"v_cvt_pk_bf16_f32 {v(vTh[i])}, {v(tl)}, {v(tl)}")
        A(f"v_lshlrev_b32 {v(vT0)}, 16, {v(vTh[i])}")
        A(f"v_sub_f32 {v(vT0)}, {v(tl)}, {v(vT0)}")
        A(f"v_cvt_pk_bf16_f32 {v(vTlo[i])}, {v(vT0)}, {v(vT0)}")
    vPD = w0 + 24
    g.wait_ds(tg1)
    for t0 in range(2):
        A(f"v_mfma_f32_16x16x32_bf16 {v(vPD+4*t0,4)}, {v(vKI,4)}, {v(w0+(t0*2)*4,4)}, 0")
        A(f"v_mfma_f32_16x16x32_bf16 {v(vPD+4*t0,4)}, {v(vKI,4)}, {v(w0+(t0*2+1)*4,4)}, {v(vPD+4*t0,4)}")
    g.wait_ds(tg2)
    for mi in range(2):
        A(f"v_mfma_f32_16x16x32_bf16 {v(vPD+8+4*mi,4)}, {v(w0+16+mi*4,4)}, {v(vTtB,4)}, 0")
    for i in range(2):
        A(f"ds_write_b16 {v(vDW)}, {v(vTh[i])} offset:{i*2048}")
        A(f"ds_write_b16 {v(vDW)}, {v(vTlo[i])} offset:{i*2048+1024}")
    A(f"v_add_u32 {v(aWR)}, {WB}, {v(vL16)}")
    A(f"s_lshl_b32 {s(sT0)}, {s(sH)}, 13")
    A(f"s_lshl_b32 {s(sT1)}, {s(sJ)}, 10")
    A(f"s_add_u32 {s(sT0)}, {s(sT0)}, {s(sT1)}")
    A(f"v_add_u32 {v(vT0)}, {s(sT0)}, {v(aWR)}")
    vB1f = w0 + 40
    A(f"s_cmp_eq_u32 {s(sH)}, 0")
    A(f"s_cselect_b32 {s(sT0)}, 0xffff0000, 0")
    A(f"v_lshlrev_b32 {v(vB1f)}, 16, {v(vB1)}")
    A(f"v_lshlrev_b32 {v(vB1f+2)}, 16, {v(vB1+1)}")
    A(f"ds_write_b128 {v(vT0)}, {v(vPD,4)}")
    A(f"ds_write_b128 {v(vT0)}, {v(vPD+4,4)} offset:4096")
    A(f"v_and_b32 {v(vB1f)}, {s(sT0)}, {v(vB1f)}")
    A(f"v_and_b32 {v(vB1f+1)}, {s(sT0)}, {v(vB1)}")
    A(f"v_and_b32 {v(vB1f+2)}, {s(sT0)}, {v(vB1f+2)}")
    A(f"v_and_b32 {v(vB1f+3)}, {s(sT0)}, {v(vB1+1)}")
    for r in range(4):
        A(f"v_sub_f32 {v(vPD+8+r)}, {v(vPD+8+r)}, {v(vPD+12+r)}")
    for r in range(4):
        A(f"v_add_f32 {v(vPD+8+r)}, {v(vPD+8+r)}, {v(vB1f+r)}")
    A(f"s_lshl_b32 {s(sT0)}, {s(sH)}, 12")
    A(f"s_lshl_b32 {s(sT1)}, {s(sJ)}, 6")
    A(f"s_add_u32 {s(sT0)}, {s(sT0)}, {s(sT1)}")
    A(f"s_add_u32 {s(sT0)}, {s(sT0)}, {CB}")
    A(f"v_lshl_add_u32 {v(vT0)}, {v(vG)}, 4, {s(sT0)}")
    A(f"v_lshl_add_u32 {v(vT0)}, {v(vN)}, 8, {v(vT0)}")
    for r in range(4):
        A(f"v_mul_f32 {v(vPD+8+r)}, {f32bits(KAPPA):#x}, {v(vPD+8+r)}")
    A(f"ds_write_b128 {v(vT0)}, {v(vPD+8,4)}")
    tgw = g.mark()

    quads = [vP + 4 * i for i in range(16)] + [w0 + 4 * i for i in range(14)]
    L = 4
    GS = 2
    R = L + 1
    opq = [(quads[2 * i], quads[2 * i + 1]) for i in range(R)]
    daq = [(quads[10 + 2 * i], quads[11 + 2 * i]) for i in range(2)]
    dq = [(quads[14 + 2 * i], quads[15 + 2 * i]) for i in range(3)]
    vCt = quads[20]
    tt = {}

    def issue_da(tau):
        for b in range(2):
            A(f"ds_read_b128 {v(daq[tau&1][b],4)}, {v(vDR[b])} offset:{tau*256}")

    def issue_wd(k):
        tau, jt = k // 4, k % 4
        wd, c = opq[k % R]
        for hh in range(2):
            A(f"ds_read_b64_tr_b16 {v(wd+2*hh,2)}, {v(aWd[(tau&1)^hh])} offset:{(tau>>1)*4096+hh*1024+jt*256}")

    def issue_c(k):
        tau, jt = k // 4, k % 4
        wd, c = opq[k % R]
        A(f"ds_read_b128 {v(c,4)}, {v(aWR)} offset:{(tau*4+jt)*1024}")
        tt[k] = g.mark()

    issue_da(0)
    for k in range(L):
        issue_wd(k)
    g.wait_ds(tgw)
    A("s_barrier")
    stamp()
    for k in range(L):
        issue_c(k)
    for q in range(4):
        A(f"global_load_dwordx2 {v(vW2+2*q,2)}, {v(vG8k)}, {s(sW2,2)} offset:{q*32}")
    for q in range(6):
        A(f"v_add_u32 {v(vRq[q])}, {v(vRq[q])}, {v(vHC)}")
    A(f"s_mov_b32 m0, {s(sHBw)}")
    A(f"buffer_load_dwordx4 {v(vRq[0])}, {s(sSRD,4)}, {s(sHo)} offen nt lds")
    A("s_add_u32 m0, m0, 1024")
    A(f"s_lshl_b32 {s(sT0)}, {s(sW)}, 9")
    A(f"s_add_u32 {s(sT0)}, {s(sT0)}, {CB}")
    A(f"v_lshl_add_u32 {v(vT0)}, {v(vLane)}, 3, {s(sT0)}")
    A(f"ds_read_b64 {v(vCt,2)}, {v(vT0)}")
    A(f"ds_read_b64 {v(vCt+2,2)}, {v(vT0)} offset:4096")
    tgc = g.mark()
    A(f"v_lshl_add_u32 {v(vC0)}, {v(vG)}, 4, {s(sT0)}")
    A(f"v_add_u32 {v(vC1)}, 256, {v(vC0)}")
    A(f"s_lshl_b32 {s(sB2v)}, {s(sB2v)}, 16")
    fill = []
    for r in range(4):
        fill.append(f"v_mov_b32 {v(vB2C+r)}, {s(sB2v)}")
    fill += [f"v_lshlrev_b32 {v(vT1)}, 8, {v(vT3)}",
             f"v_lshl_add_u32 {v(vT1)}, {v(vT2)}, 4, {v(vT1)}",
             f"v_and_b32 {v(vT2)}, 7, {v(vN)}",
             f"v_lshl_add_u32 {v(vT1)}, {v(vT2)}, 5, {v(vT1)}",
             f"v_add_u32 {v(vZoff)}, {ZB}, {v(vT1)}",
             f"v_lshrrev_b32 {v(vT2)}, 3, {v(vN)}",
             f"v_lshl_add_u32 {v(vBoff)}, {v(vT2)}, 10, {v(vT1)}",
             f"v_add_u32 {v(vRA)}, {1024+96}, {v(vRA)}"]
    fill += [f"v_mov_b32 {v(vD3+i)}, 0" for i in range(16)]
    for f in fill:
        A(f)
    A(f"s_add_u32 {s(sT)}, {s(sN0)}, {s(sN1)}")
    A(f"s_add_u32 {s(sT)}, {s(sT)}, 15")
    A(f"s_lshr_b32 {s(sT)}, {s(sT)}, 4")
    A(f"s_max_u32 {s(sT3)}, {s(sT)}, 3")
    A(f"s_sub_u32 {s(sT3)}, {s(sT3)}, 1")

    def cvts(k):
        tau, jt = k // 4, k % 4
        for b in range(2):
            d = dq[k % 3][b]
            o = vWeff[b] + (jt * 2 + (tau >> 1)) * 4 + 2 * (tau & 1)
            A(f"v_cvt_pk_bf16_f32 {v(o)}, {v(d)}, {v(d+1)}")
            A(f"v_cvt_pk_bf16_f32 {v(o+1)}, {v(d+2)}, {v(d+3)}")

    for k in range(16):
        tau, jt = k // 4, k % 4
        g.wait_ds(tt[k])
        wd, c = opq[k % R]
        for b in range(2):
            A(f"v_mfma_f32_16x16x32_bf16 {v(dq[k%3][b],4)}, {v(daq[tau&1][b],4)}, {v(wd,4)}, {v(c,4)}")
        kn = k + L
        if kn < 16:
            if kn % 4 == 0:
                issue_da(kn // 4)
            issue_wd(kn)
            issue_c(kn)
        if k == 0:
            g.wait_ds(tgc)
            A(f"v_add_f32 {v(vCt)}, {v(vCt)}, {v(vCt+2)}")
            A(f"v_add_f32 {v(vCt+1)}, {v(vCt+1)}, {v(vCt+3)}")
            A(f"ds_write_b64 {v(vT0)}, {v(vCt,2)}")
        if k >= 1:
            cvts(k - 1)
        if k % GS == 0 and 1 + k // GS < 6:
            A(f"buffer_load_dwordx4 {v(vRq[1 + k // GS])}, {s(sSRD,4)}, {s(sHo)} offen nt lds")
            A("s_add_u32 m0, m0, 1024")
    A(f"s_mov_b32 {s(sTi)}, 0")
    A(f"s_mov_b32 {s(sRel)}, {s(sN0)}")
    A(f"s_mov_b32 {s(sTB)}, {s(sHBw)}")
    A(f"s_add_u32 {s(sPB)}, {s(sHBw)}, {3*2048}")
    cvts(15)
    stamp()
    A(f"s_cmp_eq_u32 {s(sT)}, 0")
    g.branch("s_cbranch_scc1 L_epi")

    def gemm1(b, hb):
        for jt in range(4):
            for ks in range(2):
                A(f"v_mfma_f32_16x16x32_bf16 {v(vD1+4*jt,4)}, {v(vWeff[b]+(jt*2+ks)*4,4)}, {v(hb+4*ks,4)}, {v(vD1+4*jt,4)}")

    g.label("L_tile")
    A(f"v_cmp_gt_i32 vcc, {s(sRel)}, {v(vN)}")
    A(f"v_add_u32 {v(vBA)}, {s(sTB)}, {v(vBoff)}")
    A(f"s_sub_u32 {s(sRem)}, {s(sT3)}, {s(sTi)}")
    A(f"v_cndmask_b32 {v(vCA)}, {v(vC1)}, {v(vC0)}, vcc")
    for jt in range(4):
        A(f"ds_read_b128 {v(vD1+4*jt,4)}, {v(vCA)} offset:{jt*64}")
    A(f"v_add_u32 {v(vTRA)}, {s(sTB)}, {v(vTRoff)}")
    A("s_waitcnt vmcnt(4)")
    A(f"s_cmp_ge_u32 {s(sRem)}, 2")
    A("s_cbranch_scc1 L_dataok")
    A("s_waitcnt vmcnt(2)")
    A(f"s_cmp_eq_u32 {s(sRem)}, 1")
    A("s_cbranch_scc1 L_dataok")
    A("s_waitcnt vmcnt(0)")
    g.raw("L_dataok:")
    A(f"s_cmp_ge_i32 {s(sRel)}, 16")
    A("s_cbranch_scc1 L_p0")
    A(f"s_cmp_le_i32 {s(sRel)}, 0")
    A("s_cbranch_scc1 L_p1")
    A(f"v_cndmask_b32 {v(vBA1)}, {v(vBA)}, {v(vZoff)}, vcc")
    A(f"v_cndmask_b32 {v(vBA)}, {v(vZoff)}, {v(vBA)}, vcc")
    A(f"ds_read_b128 {v(vHB1,4)}, {v(vBA1)}")
    A(f"ds_read_b128 {v(vHB1+4,4)}, {v(vBA1)} offset:512")
    A("s_waitcnt lgkmcnt(0)")
    gemm1(1, vHB1)
    g.raw("L_p0:")
    A(f"ds_read_b128 {v(vHB,4)}, {v(vBA)}")
    A(f"ds_read_b128 {v(vHB+4,4)}, {v(vBA)} offset:512")
    A("s_waitcnt lgkmcnt(0)")
    gemm1(0, vHB)
    A("s_branch L_fin")
    g.raw("L_p1:")
    A(f"ds_read_b128 {v(vHB,4)}, {v(vBA)}")
    A(f"ds_read_b128 {v(vHB+4,4)}, {v(vBA)} offset:512")
    A("s_waitcnt lgkmcnt(0)")
    gemm1(1, vHB)
    g.raw("L_fin:")
    g.hist = [i for i in g.hist if i.kind == "mfma"][-8:]
    for dt in range(4):
        A(f"ds_read_b64_tr_b16 {v(vTRr+2*dt,2)}, {v(vTRA)} offset:{dt*256}")
    A(f"ds_read_b128 {v(vM,4)}, {v(vMA)}")
    A(f"ds_read_u16 {v(vR[0])}, {v(vRA)}")
    A(f"ds_read_u16 {v(vR[1])}, {v(vRA)} offset:16")
    for jt in range(4):
        d = vD1 + 4 * jt
        for r in range(4):
            A(f"v_exp_f32 {v(d+r)}, {v(d+r)}")
        for r in range(4):
            A(f"v_add_f32 {v(d+r)}, 1.0, {v(d+r)}")
        if jt > 0:
            p = vD1 + 4 * (jt - 1)
            A(f"v_cvt_pk_bf16_f32 {v(vH+2*(jt-1))}, {v(p)}, {v(p+1)}")
            A(f"v_cvt_pk_bf16_f32 {v(vH+2*(jt-1)+1)}, {v(p+2)}, {v(p+3)}")
        for r in range(4):
            A(f"v_rcp_f32 {v(d+r)}, {v(d+r)}")
            if jt == 2 and r == 1:
                A(f"v_mfma_f32_16x16x32_bf16 {v(vD2,4)}, {v(vH,4)}, {v(vW2,4)}, {v(vB2C,4)}")
    p = vD1 + 12
    A(f"s_add_u32 {s(sT0)}, {s(sTi)}, 3")
    A(f"v_cvt_pk_bf16_f32 {v(vH+6)}, {v(p)}, {v(p+1)}")
    A(f"v_cvt_pk_bf16_f32 {v(vH+7)}, {v(p+2)}, {v(p+3)}")
    A(f"v_add_u32 {v(vMA)}, 64, {v(vMA)}")
    A("s_waitcnt lgkmcnt(0)")
    A(f"v_mfma_f32_16x16x32_bf16 {v(vD2,4)}, {v(vH+4,4)}, {v(vW2+4,4)}, {v(vD2,4)}")
    A(f"s_cmp_ge_u32 {s(sT0)}, {s(sT)}")
    A("s_cbranch_scc1 L_nopf")
    A(f"s_mov_b32 m0, {s(sPB)}")
    A(f"v_add_u32 {v(vR[0])}, {v(vR[0])}, {v(vHC)}")
    A(f"v_add_u32 {v(vR[1])}, {v(vR[1])}, {v(vHC)}")
    A(f"buffer_load_dwordx4 {v(vR[0])}, {s(sSRD,4)}, {s(sHo)} offen nt lds")
    A("s_add_u32 m0, m0, 1024")
    A(f"v_add_u32 {v(vRA)}, 32, {v(vRA)}")
    A(f"buffer_load_dwordx4 {v(vR[1])}, {s(sSRD,4)}, {s(sHo)} offen nt lds")
    A(f"s_add_u32 {s(sPB)}, {s(sPB)}, 2048")
    A(f"s_cmp_eq_u32 {s(sT0)}, 4")
    A(f"s_cselect_b32 {s(sPB)}, {s(sOVw)}, {s(sPB)}")
    g.raw("L_nopf:")
    g.hist = [i for i in g.hist if i.kind == "mfma"][-1:]
    A(f"s_add_u32 {s(sTi)}, {s(sTi)}, 1")
    A(f"s_sub_u32 {s(sRel)}, {s(sRel)}, 16")
    A(f"s_add_u32 {s(sTB)}, {s(sTB)}, 2048")
    A(f"s_cmp_eq_u32 {s(sTi)}, 5")
    A(f"s_cselect_b32 {s(sTB)}, {s(sOVw)}, {s(sTB)}")
    for r in range(4):
        A(f"v_mul_f32 {v(vM+r)}, {v(vD2+r)}, {v(vM+r)}")
    A(f"v_cvt_pk_bf16_f32 {v(vS)}, {v(vM)}, {v(vM+1)}")
    A(f"v_cvt_pk_bf16_f32 {v(vS+1)}, {v(vM+2)}, {v(vM+3)}")
    A(f"s_cmp_lt_u32 {s(sTi)}, {s(sT)}")
    for dt in range(4):
        A(f"v_mfma_f32_16x16x16_bf16 {v(vD3+4*dt,4)}, {v(vTRr+2*dt,2)}, {v(vS,2)}, {v(vD3+4*dt,4)}")
    A("s_cbranch_scc1 L_tile")

    g.label("L_epi")
    stamp()
    vO = vP
    for dt in range(4):
        A(f"v_cvt_pk_bf16_f32 {v(vO+2*dt)}, {v(vD3+4*dt)}, {v(vD3+4*dt+1)}")
        A(f"v_cvt_pk_bf16_f32 {v(vO+2*dt+1)}, {v(vD3+4*dt+2)}, {v(vD3+4*dt+3)}")
    A("s_mov_b32 exec_lo, 0x01010101")
    A("s_mov_b32 exec_hi, 0x01010101")
    for dt in range(4):
        A(f"global_store_dwordx2 {v(vOA)}, {v(vO+2*dt,2)}, {s(sOb,2)} offset:{dt*32}")
    if debug:
        A("s_waitcnt vmcnt(0)")
        A(f"s_memrealtime {s(sRT+2,2)}")
        A("s_waitcnt lgkmcnt(0)")
        A("s_mov_b64 exec, 1")
        for i in range(1, NST):
            A(f"s_sub_u32 {s(sST+2*i)}, {s(sST+2*i)}, {s(sST)}")
        A(f"s_lshl_b32 {s(sT0)}, s2, 3")
        A(f"s_add_u32 {s(sT0)}, {s(sT0)}, {s(sW)}")
        A(f"s_lshl_b32 {s(sT0)}, {s(sT0)}, 6")
        A(f"v_mov_b32 {v(vT0)}, {s(sT0)}")
        for i in range(4):
            A(f"v_mov_b32 {v(vD1+i)}, {s(sRT+i)}")
        for i in range(1, NST):
            A(f"v_mov_b32 {v(vD1+3+i)}, {s(sST+2*i)}")
        A(f"v_mov_b32 {v(vD1+3+NST)}, {s(sT)}")
        A(f"global_store_dwordx4 {v(vT0)}, {v(vD1,4)}, {s(sWS,2)}")
        A(f"global_store_dwordx4 {v(vT0)}, {v(vD1+4,4)}, {s(sWS,2)} offset:16")
        A(f"global_store_dwordx4 {v(vT0)}, {v(vD1+8,4)}, {s(sWS,2)} offset:32")
    g.raw("L_end:")
    g.raw("    s_endpgm")
    nv = (g.nv + 7) // 8 * 8
    assert nv <= 256, g.nv
    g.raw('.section .rodata,"a"')
    g.raw(".p2align 6")
    g.raw(f".amdhsa_kernel {KN}")
    g.raw(f"  .amdhsa_next_free_vgpr {nv}")
    g.raw(f"  .amdhsa_next_free_sgpr {max(g.ns, 32)}")
    g.raw(f"  .amdhsa_accum_offset {nv}")
    g.raw("  .amdhsa_group_segment_fixed_size 0")
    g.raw("  .amdhsa_kernarg_size 80")
    g.raw("  .amdhsa_user_sgpr_count 2")
    g.raw("  .amdhsa_user_sgpr_kernarg_segment_ptr 1")
    g.raw("  .amdhsa_system_sgpr_workgroup_id_x 1")
    g.raw("  .amdhsa_float_denorm_mode_32 3")
    g.raw("  .amdhsa_float_denorm_mode_16_64 3")
    g.raw(".end_amdhsa_kernel")
    sys.stderr.write(f"vgprs {g.nv} sgprs {g.ns} nops {g.nops} lds {LDS_BYTES} stamps {stamp_i[0]}\n")
    return g.text()


if __name__ == "__main__":
    out = sys.argv[1] if len(sys.argv) > 1 else "standalone__sequential_behavior_din__recsys.s"
    open(out, "w").write(gen(debug=("--debug" in sys.argv)))
```

```python
import sys, struct
sys.path.insert(0, "tools")
from asmgen import Gen, v, s

KN = "standalone__sequential_behavior_din__recsys_kernel"


def f32bits(x):
    return struct.unpack("<I", struct.pack("<f", x))[0]


def bf16_rne(x):
    u = f32bits(x)
    return ((u + 0x7FFF + ((u >> 16) & 1)) >> 16) & 0xFFFF


def bf16_to_f(h):
    return struct.unpack("<f", struct.pack("<I", h << 16))[0]


KAPPA = -1.4426950408889634
K1 = bf16_rne(KAPPA)
K2 = bf16_rne(KAPPA - bf16_to_f(K1))
KB = f"{f32bits(KAPPA):#x}"

HB = 0
PB = 81920
TL = PB + 24576
WV = PB + 27648
DBW = 114688
WB = 122880
CB = 139264
CP = 272
TP = 160
ZB = 147968
MB = 148992
LDS_BYTES = MB + 8 * 1280


def gen(debug=False, opts=()):
    g = Gen()
    A = g
    hdr = open("standalone__sequential_behavior_din__recsys.s.ref").read().split("\n")
    for ln in hdr:
        if ln.startswith("; @launch"):
            break
        g.raw(ln)
    g.raw(f"; @launch grid=(256,1,1) block=(512,1,1) lds={LDS_BYTES}")
    g.raw('.amdgcn_target "amdgcn-amd-amdhsa--gfx950"')
    g.raw(".text")
    g.raw(f".globl {KN}")
    g.raw(".p2align 8")
    g.raw(f".type {KN},@function")
    g.raw(f"{KN}:")

    g.ns = 4
    sP = g.sreg(16)
    sTG, sHI, sMK, sW1, sB1, sW2, sB2, sOUT = [sP + 2 * i for i in range(8)]
    sSRD = g.sreg(4)
    sW = g.sreg(); sB0 = g.sreg(); sH = g.sreg(); sJ = g.sreg()
    sT0 = g.sreg(); sT1 = g.sreg(); sHo = g.sreg(); sB2v = g.sreg()
    sMb = g.sreg(2); sTb = g.sreg(2); sWb = g.sreg(2); sOb = g.sreg(2)
    sA0 = g.sreg(2); sA1 = g.sreg(2); sTmp2 = g.sreg(2)
    sSel = [g.sreg(2) for _ in range(3)]
    sN0 = g.sreg(); sT = g.sreg(); sT3 = g.sreg()
    sScr = g.sreg(); sHBw = g.sreg(); sOVw = g.sreg()
    sTi = g.sreg(); sRel = g.sreg(); sTB = g.sreg(); sPB = g.sreg(); sRem = g.sreg()

    g.nv = 1
    vN = g.vreg(); vHC = g.vreg(); vC0 = g.vreg(); vBoff = g.vreg(); vZoff = g.vreg(); vTRoff = g.vreg()
    vMA = g.vreg(); vRA = g.vreg(); vOA = g.vreg()
    vCA = g.vreg(); vBA = g.vreg(); vBA1 = g.vreg(); vTRA = g.vreg(); vR = [g.vreg(), g.vreg()]
    vWtr = [g.vreg(), g.vreg()]; vCtr = [g.vreg(), g.vreg()]; vTtA = g.vreg(); vWw = g.vreg(); vCw = g.vreg()
    vDR = g.vreg(); vCS = g.vreg(); vWVr = g.vreg(); vB1 = g.vreg(); vT0 = g.vreg(); vT1 = g.vreg()
    vRq = [g.vreg() for _ in range(6)]
    vS = g.vreg(2)
    vMq = g.vreg(4); vKI = g.vreg(4)
    vWeff = [g.vreg(32), g.vreg(32)]
    vW2 = g.vreg(8)
    vD3 = g.vreg(16)
    vB2C = g.vreg(4)
    pool = g.vreg(108)
    P = [pool + 4 * i for i in range(27)]
    vD1 = P[0]; vHB = P[4]; vHB1 = P[6]; vTRr = P[8]; vH = P[10]; vD2 = P[12]; vM = P[13]
    vCr = [[P[16], P[17], P[18], P[19]], [P[20], P[21], P[24], P[25]]]
    aWR, aWd = vCA, [vBA, vBA1]
    daq = [[P[b * 4 + tau] for tau in range(4)] for b in range(2)]
    dq = [(P[8 + 2 * i], P[9 + 2 * i]) for i in range(3)]
    opq = [(P[14 + 2 * i], P[15 + 2 * i]) for i in range(5)]
    vTv = P[8]
    vCt = P[26]
    pCA = [P[10], P[11]]
    pWB = [[P[12], P[13]], [P[15], P[17]]]
    vTt, vTn = P[19], P[21]
    vPD = [P[22], P[23], P[24]]
    e = iter(range(pool + 40, pool + 108))
    vZ4 = next(e); next(e); next(e); next(e)
    vLane, vG, vMk, vTk, vMe, vMo, vL4, vL16, vS8, vWo, vG8, vRow, vMoff, vTLw = [next(e) for _ in range(14)]
    vPe, vPo, vU0, vU1, vU2, vU3, vDW, vTh, vTlo, vG2, vGh, vN8 = [next(e) for _ in range(12)]
    vAd = next(e)
    if vAd % 2:
        vAd = next(e)
    next(e)

    NST = 13
    if debug:
        sST = g.sreg(2 * NST, 4); sRT = g.sreg(4, 4); sWS = g.sreg(2)
    stamp_i = [0]

    def stamp():
        if debug:
            A(f"s_memtime {s(sST+2*stamp_i[0],2)}")
            stamp_i[0] += 1

    def gather(q):
        A(f"buffer_load_dwordx4 {v(vRq[q])}, {s(sSRD,4)}, {s(sHo)} offen nt lds")
        if q < 5:
            A("s_add_u32 m0, m0, 1024")

    if debug:
        A(f"s_memrealtime {s(sRT,2)}")
        A(f"s_load_dwordx2 {s(sWS,2)}, s[0:1], 72")
    stamp()
    A("s_cmp_ge_u32 s2, 256")
    A("s_cbranch_scc1 L_end")
    A(f"s_load_dwordx16 {s(sP,16)}, s[0:1], 0")
    A(f"v_lshrrev_b32 {v(vT0)}, 6, v0")
    A(f"v_and_b32 {v(vLane)}, 63, v0")
    A(f"v_readfirstlane_b32 {s(sW)}, {v(vT0)}")
    A(f"v_and_b32 {v(vN)}, 15, v0")
    A(f"v_lshrrev_b32 {v(vG)}, 4, {v(vLane)}")
    A(f"v_lshlrev_b32 {v(vL4)}, 2, {v(vLane)}")
    A(f"v_mov_b32 {v(vMk)}, 0")
    A(f"v_and_b32 {v(vT1)}, 1, {v(vLane)}")
    A(f"v_lshlrev_b32 {v(vT1)}, 4, {v(vT1)}")
    A(f"v_lshl_add_u32 {v(vHC)}, {v(vG)}, 5, {v(vT1)}")
    A(f"v_lshrrev_b32 {v(vS8)}, 1, {v(vN)}")
    A(f"s_lshr_b32 {s(sT0)}, {s(sW)}, 1")
    A(f"s_xor_b32 {s(sT0)}, {s(sT0)}, {s(sW)}")
    A(f"s_and_b32 {s(sT0)}, {s(sT0)}, 1")
    A(f"s_lshl_b32 {s(sT0)}, {s(sT0)}, 2")
    A(f"v_xor_b32 {v(vT1)}, {s(sT0)}, {v(vS8)}")
    A(f"v_lshl_add_u32 {v(vWo)}, {v(vT1)}, 7, {v(vHC)}")
    A(f"s_lshl_b32 {s(sB0)}, s2, 4")
    A(f"s_lshl_b32 {s(sT0)}, {s(sW)}, 1")
    A(f"s_add_u32 {s(sB0)}, {s(sB0)}, {s(sT0)}")
    A(f"s_lshl_b32 {s(sT1)}, {s(sW)}, 10")
    A(f"s_mul_i32 {s(sT0)}, {s(sB0)}, 100")
    A(f"s_lshl_b32 {s(sHo)}, {s(sB0)}, 7")
    A(f"s_lshr_b32 {s(sH)}, {s(sW)}, 2")
    A(f"s_and_b32 {s(sJ)}, {s(sW)}, 3")
    A(f"s_mul_i32 {s(sScr)}, {s(sW)}, 1280")
    A(f"s_add_u32 {s(sScr)}, {s(sScr)}, {MB}")
    A(f"s_mul_i32 {s(sHBw)}, {s(sW)}, 10240")
    A(f"s_lshl_b32 {s(sOVw)}, {s(sW)}, 12")
    A(f"s_add_u32 {s(sOVw)}, {s(sOVw)}, {PB}")
    for r in range(4):
        A(f"v_mov_b32 {v(vZ4+r)}, 0")
    A(f"v_lshlrev_b32 {v(vL16)}, 4, {v(vLane)}")
    A(f"v_add_u32 {v(vT0)}, {s(sScr)}, {v(vL16)}")
    A(f"v_add_u32 {v(vT1)}, {s(sScr)}, {v(vL4)}")
    A(f"s_mov_b32 m0, {WV}")
    A(f"s_cmp_lg_u32 {s(sW)}, 7")
    A("s_waitcnt lgkmcnt(0)")
    stamp()
    A("s_cbranch_scc1 L_nowv")
    A("s_mov_b32 exec_hi, 0")
    A(f"global_load_lds_dword {v(vL4)}, {s(sW2,2)}")
    A(f"s_mov_b32 m0, {WV+128}")
    A("s_nop 0")
    A(f"global_load_lds_dword {v(vL4)}, {s(sB1,2)}")
    A("s_mov_b32 exec_hi, -1")
    g.raw("L_nowv:")
    A(f"s_add_u32 {s(sMb)}, {s(sMK)}, {s(sT0)}")
    A(f"s_addc_u32 {s(sMb+1)}, {s(sMK+1)}, 0")
    A("s_mov_b32 exec_hi, 0x3ffff")
    A(f"global_load_dword {v(vMk)}, {v(vL4)}, {s(sMb,2)}")
    A("s_mov_b32 exec_hi, -1")
    A(f"s_add_u32 {s(sTb)}, {s(sTG)}, {s(sHo)}")
    A(f"s_addc_u32 {s(sTb+1)}, {s(sTG+1)}, 0")
    A(f"global_load_dword {v(vTk)}, {v(vL4)}, {s(sTb,2)}")
    A(f"s_add_u32 {s(sWb)}, {s(sW1)}, {s(sT1)}")
    A(f"s_addc_u32 {s(sWb+1)}, {s(sW1+1)}, 0")
    A(f"s_add_u32 m0, {s(sT1)}, {PB}")
    for mat in range(4):
        A(f"global_load_lds_dwordx4 {v(vWo)}, {s(sWb,2)}")
        if mat < 3:
            A(f"s_add_u32 {s(sWb)}, {s(sWb)}, 8192")
            A(f"s_addc_u32 {s(sWb+1)}, {s(sWb+1)}, 0")
            A(f"s_add_u32 m0, m0, {8192 if mat < 2 else 16384}")
    A(f"s_load_dword {s(sB2v)}, {s(sB2,2)}, 0")
    A(f"ds_write_b128 {v(vT0)}, {v(vZ4,4)}")
    A(f"ds_write_b32 {v(vT1)}, {v(vZ4)} offset:1024")
    A(f"s_add_u32 {s(sOb)}, {s(sOUT)}, {s(sHo)}")
    A(f"s_addc_u32 {s(sOb+1)}, {s(sOUT+1)}, 0")
    A(f"s_mul_i32 {s(sHo)}, {s(sB0)}, 6400")
    A(f"s_mov_b32 {s(sSRD)}, {s(sHI)}")
    A(f"s_and_b32 {s(sSRD+1)}, {s(sHI+1)}, 0xffff")
    A(f"s_mov_b32 {s(sSRD+2)}, 26214400")
    A(f"s_mov_b32 {s(sSRD+3)}, 0x00020000")
    A(f"v_lshl_add_u32 {v(vRA)}, {v(vS8)}, 1, {s(sScr)}")
    A(f"v_lshlrev_b32 {v(vRow)}, 8, {v(vLane)}")
    A(f"v_cmp_lt_u32 vcc, 24, {v(vLane)}")
    A(f"v_mov_b32 {v(vT1)}, 448")
    A(f"v_lshlrev_b32 {v(vG8)}, 3, {v(vG)}")
    A(f"v_cndmask_b32 {v(vMoff)}, 0, {v(vT1)}, vcc")
    A(f"v_add_u32 {v(vMoff)}, {s(sScr)}, {v(vMoff)}")
    A(f"v_add_u32 {v(vU2)}, 128, {v(vRow)}")
    A(f"s_lshl_b32 {s(sT0)}, {s(sW)}, 7")
    A(f"s_add_u32 {s(sT0)}, {s(sT0)}, {ZB}")
    A(f"v_add_u32 {v(vT0)}, {s(sT0)}, {v(vL4)}")
    A("s_mov_b32 exec_hi, 0")
    A(f"ds_write_b32 {v(vT0)}, {v(vZ4)}")
    A("s_mov_b32 exec_hi, -1")
    A(f"v_lshrrev_b32 {v(vGh)}, 1, {v(vG)}")
    A(f"v_and_b32 {v(vG2)}, 1, {v(vG)}")
    A(f"v_lshlrev_b32 {v(vN8)}, 3, {v(vN)}")
    A(f"s_add_u32 {s(sT0)}, {s(sHBw)}, 6144")
    A(f"v_add_u32 {v(vDW)}, {s(sT0)}, {v(vL4)}")
    A(f"v_lshl_add_u32 {v(vT0)}, {v(vGh)}, 8, {s(sT0)}")
    A(f"v_lshrrev_b32 {v(vT1)}, 2, {v(vN)}")
    A(f"v_lshl_add_u32 {v(vT0)}, {v(vT1)}, 4, {v(vT0)}")
    A(f"v_bfe_u32 {v(vT1)}, {v(vN)}, 1, 1")
    A(f"v_lshl_add_u32 {v(vDR)}, {v(vT1)}, 2, {v(vT0)}")
    A(f"s_mul_i32 {s(sT0)}, {s(sW)}, {2*TP}")
    A(f"s_add_u32 {s(sT0)}, {s(sT0)}, {TL}")
    A(f"v_mad_u32_u24 {v(vTLw)}, {v(vGh)}, {TP-128}, {v(vL4)}")
    A(f"v_add_u32 {v(vTLw)}, {s(sT0)}, {v(vTLw)}")
    A(f"v_lshrrev_b32 {v(vT1)}, 3, {v(vN)}")
    A(f"v_cmp_eq_u32 vcc, {v(vT1)}, {v(vG2)}")
    A(f"v_and_b32 {v(vU0)}, 1, {v(vN)}")
    A(f"v_lshlrev_b32 {v(vU0)}, 4, {v(vU0)}")
    A(f"v_mov_b32 {v(vU1)}, 0xffff")
    A(f"v_lshlrev_b32 {v(vU0)}, {v(vU0)}, {v(vU1)}")
    A(f"v_cndmask_b32 {v(vU0)}, 0, {v(vU0)}, vcc")
    A(f"v_bfe_u32 {v(vU1)}, {v(vN)}, 1, 2")
    A(f"v_cmp_gt_u32 {s(sTmp2,2)}, 2, {v(vG)}")
    A(f"v_mov_b32 {v(vT0)}, {K2 | (K2 << 16):#x}")
    A(f"v_mov_b32 {v(vU3)}, {K1 | (K1 << 16):#x}")
    A(f"v_cndmask_b32 {v(vT0)}, {v(vT0)}, {v(vU3)}, {s(sTmp2,2)}")
    for q in range(4):
        A(f"v_cmp_eq_u32 vcc, {q}, {v(vU1)}")
        A(f"v_cndmask_b32 {v(vMq+q)}, 0, {v(vU0)}, vcc")
    for q in range(4):
        A(f"v_and_b32 {v(vKI+q)}, {v(vT0)}, {v(vMq+q)}")
    A(f"v_mul_u32_u24 {v(vU0)}, 448, {v(vT1)}")
    A(f"v_lshl_add_u32 {v(vU0)}, {v(vG)}, 4, {v(vU0)}")
    A(f"v_add_u32 {v(vMA)}, {s(sScr)}, {v(vU0)}")
    A(f"v_lshl_add_u32 {v(vOA)}, {v(vT1)}, 7, {v(vG8)}")
    A(f"v_and_b32 {v(vU0)}, 3, {v(vN)}")
    A(f"v_lshl_add_u32 {v(vOA)}, {v(vU0)}, 5, {v(vOA)}")
    for i in range(3):
        A(f"v_cmp_eq_u32 {s(sSel[i],2)}, {i+1}, {v(vU0)}")
    A(f"v_lshlrev_b32 {v(vU0)}, 8, {v(vGh)}")
    A(f"v_lshl_add_u32 {v(vU0)}, {v(vG2)}, 4, {v(vU0)}")
    A(f"v_and_b32 {v(vU1)}, 7, {v(vN)}")
    A(f"v_lshl_add_u32 {v(vU0)}, {v(vU1)}, 5, {v(vU0)}")
    A(f"v_add_u32 {v(vZoff)}, {ZB}, {v(vU0)}")
    A(f"v_lshl_add_u32 {v(vBoff)}, {v(vT1)}, 10, {v(vU0)}")

    A(f"v_lshl_add_u32 {v(vT0)}, {v(vG2)}, 11, {v(vN8)}")
    A(f"v_lshl_add_u32 {v(vT0)}, {v(vG2)}, 7, {v(vT0)}")
    A(f"s_lshl_b32 {s(sT0)}, {s(sH)}, 12")
    A(f"s_lshl_b32 {s(sT1)}, {s(sJ)}, 8")
    A(f"s_add_u32 {s(sT0)}, {s(sT0)}, {s(sT1)}")
    A(f"s_add_u32 {s(sT0)}, {s(sT0)}, {PB}")
    A(f"v_add_u32 {v(vWtr[0])}, {s(sT0)}, {v(vT0)}")
    A(f"v_xor_b32 {v(vWtr[1])}, 128, {v(vWtr[0])}")
    A(f"v_add_u32 {v(aWd[0])}, {DBW}, {v(vT0)}")
    A(f"v_xor_b32 {v(aWd[1])}, 128, {v(aWd[0])}")
    A(f"v_xor_b32 {v(vT0)}, {v(vGh)}, {v(vG2)}")
    A(f"v_lshl_add_u32 {v(vT0)}, {v(vT0)}, 7, {v(vN8)}")
    A(f"v_lshl_add_u32 {v(vT0)}, {v(vG)}, 10, {v(vT0)}")
    A(f"v_add_u32 {v(vCtr[0])}, {s(sT0)}, {v(vT0)}")
    A(f"v_xor_b32 {v(vCtr[1])}, 128, {v(vCtr[0])}")
    A(f"s_lshl_b32 {s(sT0)}, {s(sH)}, 6")
    A(f"s_add_u32 {s(sT0)}, {s(sT0)}, {TL}")
    A(f"v_lshl_add_u32 {v(vT0)}, {v(vG)}, 4, {s(sT0)}")
    A(f"v_mul_u32_u24 {v(vTtA)}, {TP}, {v(vN)}")
    A(f"v_add_u32 {v(vTtA)}, {v(vTtA)}, {v(vT0)}")
    A(f"v_add_u32 {v(aWR)}, {WB}, {v(vL16)}")
    A(f"s_lshl_b32 {s(sT0)}, {s(sH)}, 13")
    A(f"s_lshl_b32 {s(sT1)}, {s(sJ)}, 10")
    A(f"s_add_u32 {s(sT0)}, {s(sT0)}, {s(sT1)}")
    A(f"v_add_u32 {v(vWw)}, {s(sT0)}, {v(aWR)}")
    A(f"s_mul_i32 {s(sT0)}, {s(sH)}, {16*CP}")
    A(f"s_lshl_b32 {s(sT1)}, {s(sJ)}, 6")
    A(f"s_add_u32 {s(sT0)}, {s(sT0)}, {s(sT1)}")
    A(f"s_add_u32 {s(sT0)}, {s(sT0)}, {CB}")
    A(f"v_lshl_add_u32 {v(vCw)}, {v(vG)}, 4, {s(sT0)}")
    A(f"v_mul_u32_u24 {v(vT0)}, {CP}, {v(vN)}")
    A(f"v_add_u32 {v(vCw)}, {v(vCw)}, {v(vT0)}")
    A(f"s_mul_i32 {s(sT0)}, {s(sW)}, {2*CP}")
    A(f"s_add_u32 {s(sT0)}, {s(sT0)}, {CB}")
    A(f"v_lshl_add_u32 {v(vCS)}, {v(vLane)}, 3, {s(sT0)}")
    A(f"v_lshl_add_u32 {v(vCS)}, {v(vGh)}, 4, {v(vCS)}")
    A(f"v_lshl_add_u32 {v(vC0)}, {v(vG)}, 4, {s(sT0)}")
    A(f"v_add_u32 {v(vWVr)}, {WV}, {v(vG8)}")
    A(f"v_and_b32 {v(vB1)}, 124, {v(vL4)}")
    A(f"v_add_u32 {v(vB1)}, {WV+128}, {v(vB1)}")
    A(f"v_lshl_add_u32 {v(vTRoff)}, {v(vG2)}, 7, {v(vN8)}")
    A(f"v_lshl_add_u32 {v(vTRoff)}, {v(vGh)}, 10, {v(vTRoff)}")
    for dt in range(4):
        A(f"v_mfma_f32_16x16x16_bf16 {v(vD3+4*dt,4)}, {v(vZ4,2)}, {v(vZ4,2)}, 0")
    A("s_waitcnt vmcnt(5)")
    stamp()
    A(f"v_lshlrev_b32 {v(vMe)}, 16, {v(vMk)}")
    A(f"v_and_b32 {v(vMo)}, 0xffff0000, {v(vMk)}")
    A(f"v_cmp_neq_f32 {s(sA0,2)}, 0, {v(vMe)}")
    A(f"v_cmp_neq_f32 {s(sA1,2)}, 0, {v(vMo)}")
    A(f"s_mov_b32 m0, {s(sHBw)}")
    A(f"v_mbcnt_lo_u32_b32 {v(vPe)}, {s(sA0)}, 0")
    A(f"v_mbcnt_hi_u32_b32 {v(vPe)}, {s(sA0+1)}, {v(vPe)}")
    A(f"v_mbcnt_lo_u32_b32 {v(vPe)}, {s(sA1)}, {v(vPe)}")
    A(f"v_mbcnt_hi_u32_b32 {v(vPe)}, {s(sA1+1)}, {v(vPe)}")
    A(f"v_addc_co_u32 {v(vPo)}, vcc, {v(vPe)}, 0, {s(sA0,2)}")
    A(f"v_lshl_add_u32 {v(vU0)}, {v(vPe)}, 1, {s(sScr)}")
    A(f"v_lshl_add_u32 {v(vU1)}, {v(vPo)}, 1, {s(sScr)}")
    A(f"s_mov_b64 exec, {s(sA0,2)}")
    A(f"ds_write_b16 {v(vU0)}, {v(vRow)} offset:1024")
    A(f"s_mov_b64 exec, {s(sA1,2)}")
    A(f"ds_write_b16 {v(vU1)}, {v(vU2)} offset:1024")
    A("s_mov_b64 exec, -1")
    tags = []
    for q in range(6):
        A(f"ds_read_u16 {v(vRq[q])}, {v(vRA)} offset:{1024+16*q}")
        tags.append(g.mark())
    A(f"v_lshl_add_u32 {v(vU0)}, {v(vPe)}, 2, {v(vMoff)}")
    A(f"v_lshl_add_u32 {v(vU1)}, {v(vPo)}, 2, {v(vMoff)}")
    A(f"s_mov_b64 exec, {s(sA0,2)}")
    A(f"ds_write_b32 {v(vU0)}, {v(vMe)}")
    A(f"s_mov_b64 exec, {s(sA1,2)}")
    A(f"ds_write_b32 {v(vU1)}, {v(vMo)}")
    A("s_mov_b64 exec, -1")
    for q in range(2):
        g.wait_ds(tags[q])
        A(f"v_add_u32 {v(vRq[q])}, {v(vRq[q])}, {v(vHC)}")
        gather(q)
    stamp()
    A("s_waitcnt vmcnt(6)")
    A(f"ds_write_b32 {v(vTLw)}, {v(vTk)}")
    A(f"v_lshlrev_b32 {v(vU0)}, 16, {v(vTk)}")
    A(f"v_and_b32 {v(vU1)}, 0xffff0000, {v(vTk)}")
    A(f"v_mul_f32 {v(vU0)}, {KB}, {v(vU0)}")
    A(f"v_mul_f32 {v(vU1)}, {KB}, {v(vU1)}")
    A(f"v_cvt_pk_bf16_f32 {v(vTh)}, {v(vU0)}, {v(vU1)}")
    A(f"v_lshlrev_b32 {v(vU2)}, 16, {v(vTh)}")
    A(f"v_and_b32 {v(vU3)}, 0xffff0000, {v(vTh)}")
    A(f"v_sub_f32 {v(vU0)}, {v(vU0)}, {v(vU2)}")
    A(f"v_sub_f32 {v(vU1)}, {v(vU1)}, {v(vU3)}")
    A(f"v_cvt_pk_bf16_f32 {v(vTlo)}, {v(vU0)}, {v(vU1)}")
    A(f"ds_write_b32 {v(vDW)}, {v(vTh)}")
    A(f"ds_write_b32 {v(vDW)}, {v(vTlo)} offset:256")
    for b in range(2):
        for th in range(2):
            A(f"ds_read2_b32 {v(vTv+b*4+2*th,2)}, {v(vDR)} offset0:{b*32+th*16} offset1:{b*32+th*16+2}")
    tgv = g.mark()
    g.wait_ds(tags[5])
    for q in range(2, 6):
        A(f"v_add_u32 {v(vRq[q])}, {v(vRq[q])}, {v(vHC)}")
    A(f"s_and_b32 {s(sT0)}, {s(sA0)}, 0x1ffffff")
    A(f"s_and_b32 {s(sT1)}, {s(sA1)}, 0x1ffffff")
    A(f"s_bcnt1_i32_b32 {s(sN0)}, {s(sT0)}")
    A(f"s_bcnt1_i32_b32 {s(sT1)}, {s(sT1)}")
    A(f"s_add_u32 {s(sN0)}, {s(sN0)}, {s(sT1)}")
    A(f"s_bcnt1_i32_b64 {s(sT)}, {s(sA0,2)}")
    A(f"s_bcnt1_i32_b64 {s(sT1)}, {s(sA1,2)}")
    A(f"s_add_u32 {s(sT)}, {s(sT)}, {s(sT1)}")
    A(f"s_add_u32 {s(sT)}, {s(sT)}, 15")
    A(f"s_lshr_b32 {s(sT)}, {s(sT)}, 4")
    A(f"s_max_u32 {s(sT3)}, {s(sT)}, 3")
    A(f"s_sub_u32 {s(sT3)}, {s(sT3)}, 1")
    def make_da(b, tau):
        for q in range(4):
            A(f"v_and_b32 {v(daq[b][tau]+q)}, {v(vTv+b*4+tau)}, {v(vMq+q)}")

    g.wait_ds(tgv)
    for tau in range(4):
        for b in range(2):
            make_da(b, tau)
    A("s_waitcnt vmcnt(2) lgkmcnt(0)")
    stamp()
    A("s_barrier")
    stamp()
    A(f"ds_read_b128 {v(vTt,4)}, {v(vTtA)}")
    for mi, off in enumerate((8192, 16384)):
        for hh in range(2):
            A(f"ds_read_b64_tr_b16 {v(pCA[mi]+2*hh,2)}, {v(vCtr[hh])} offset:{off}")
    tg2 = g.mark()
    tg1 = []
    for t0 in range(2):
        for mi in range(2):
            for hh in range(2):
                A(f"ds_read_b64_tr_b16 {v(pWB[t0][mi]+2*hh,2)}, {v(vWtr[t0^hh])} offset:{mi*16384+hh*1024}")
        tg1.append(g.mark())
    gather(2)
    A(f"s_lshl_b32 {s(sB2v)}, {s(sB2v)}, 16")
    A(f"s_mov_b32 {s(sT0)}, 0x80008000")

    g.wait_ds(tg2)
    for r in range(4):
        A(f"v_xor_b32 {v(vTn+r)}, {s(sT0)}, {v(vTt+r)}")
    A(f"v_mfma_f32_16x16x32_bf16 {v(vPD[2],4)}, {v(pCA[0],4)}, {v(vTt,4)}, 0")
    A(f"v_mfma_f32_16x16x32_bf16 {v(vPD[2],4)}, {v(pCA[1],4)}, {v(vTn,4)}, {v(vPD[2],4)}")
    for t0 in range(2):
        g.wait_ds(tg1[t0])
        A(f"v_mfma_f32_16x16x32_bf16 {v(vPD[t0],4)}, {v(vKI,4)}, {v(pWB[t0][0],4)}, 0")
        A(f"v_mfma_f32_16x16x32_bf16 {v(vPD[t0],4)}, {v(vKI,4)}, {v(pWB[t0][1],4)}, {v(vPD[t0],4)}")

    L = 4
    R = L + 1
    tt = {}

    def issue_wd(k):
        tau, jt = k // 4, k % 4
        wd, c = opq[k % R]
        for hh in range(2):
            A(f"ds_read_b64_tr_b16 {v(wd+2*hh,2)}, {v(aWd[(tau&1)^hh])} offset:{(tau>>1)*4096+hh*1024+jt*256}")

    def issue_c(k):
        tau, jt = k // 4, k % 4
        wd, c = opq[k % R]
        A(f"ds_read_b128 {v(c,4)}, {v(aWR)} offset:{(tau*4+jt)*1024}")
        tt[k] = g.mark()

    A(f"ds_write_b128 {v(vCw)}, {v(vPD[2],4)}")
    A(f"ds_write_b128 {v(vWw)}, {v(vPD[0],4)}")
    A(f"ds_write_b128 {v(vWw)}, {v(vPD[1],4)} offset:4096")
    tgw = g.mark()
    for k in range(L):
        issue_wd(k)
    A(f"ds_read2_b64 {v(vW2,4)}, {v(vWVr)} offset0:0 offset1:4")
    A(f"ds_read2_b64 {v(vW2+4,4)}, {v(vWVr)} offset0:8 offset1:12")
    A(f"ds_read_b32 {v(vB1)}, {v(vB1)}")
    gather(3)
    for r in range(4):
        A(f"v_mov_b32 {v(vB2C+r)}, {s(sB2v)}")
    stamp()
    g.wait_ds(tgw)
    A("s_barrier")
    stamp()
    for k in range(L):
        issue_c(k)
    A(f"ds_read_b64 {v(vCt,2)}, {v(vCS)}")
    A(f"ds_read_b64 {v(vCt+2,2)}, {v(vCS)} offset:{16*CP}")
    tgc = g.mark()
    gather(4)

    def cvts(k):
        tau, jt = k // 4, k % 4
        for b in range(2):
            d = dq[k % 3][b]
            o = vWeff[b] + (jt * 2 + (tau >> 1)) * 4 + 2 * (tau & 1)
            A(f"v_cvt_pk_bf16_f32 {v(o)}, {v(d)}, {v(d+1)}")
            A(f"v_cvt_pk_bf16_f32 {v(o+1)}, {v(d+2)}, {v(d+3)}")

    for k in range(16):
        tau, jt = k // 4, k % 4
        g.wait_ds(tt[k])
        wd, c = opq[k % R]
        for b in range(2):
            A(f"v_mfma_f32_16x16x32_bf16 {v(dq[k%3][b],4)}, {v(daq[b][tau],4)}, {v(wd,4)}, {v(c,4)}")
        kn = k + L
        if kn < 16:
            issue_wd(kn)
            issue_c(kn)
        if k == 1:
            gather(5)
            g.wait_ds(tgc)
            A(f"v_lshlrev_b32 {v(vT0)}, 16, {v(vB1)}")
            A(f"v_and_b32 {v(vT1)}, 0xffff0000, {v(vB1)}")
            A(f"v_add_f32 {v(vCt)}, {v(vCt)}, {v(vCt+2)}")
            A(f"v_add_f32 {v(vCt+1)}, {v(vCt+1)}, {v(vCt+3)}")
            A(f"v_add_f32 {v(vCt)}, {v(vCt)}, {v(vT0)}")
            A(f"v_add_f32 {v(vCt+1)}, {v(vCt+1)}, {v(vT1)}")
            A(f"v_mul_f32 {v(vCt)}, {KB}, {v(vCt)}")
            A(f"v_mul_f32 {v(vCt+1)}, {KB}, {v(vCt+1)}")
            A(f"ds_write_b64 {v(vCS)}, {v(vCt,2)}")
        if k == 14:
            for b in range(2):
                for j2 in range(4):
                    A(f"ds_read_b128 {v(vCr[b][j2],4)}, {v(vC0)} offset:{b*CP+j2*64}")
        if k >= 1:
            cvts(k - 1)
    A(f"s_mov_b32 {s(sTi)}, 0")
    A(f"s_mov_b32 {s(sRel)}, {s(sN0)}")
    A(f"s_mov_b32 {s(sTB)}, {s(sHBw)}")
    A(f"s_add_u32 {s(sPB)}, {s(sHBw)}, {3*2048}")
    cvts(15)
    stamp()
    A(f"s_cmp_eq_u32 {s(sT)}, 0")
    g.branch("s_cbranch_scc1 L_epi")

    def gemm1(b, hb, cinit):
        for jt in range(4):
            for ks in range(2):
                c = vCr[b][jt] if (cinit and ks == 0) else vD1 + 4 * jt
                A(f"v_mfma_f32_16x16x32_bf16 {v(vD1+4*jt,4)}, {v(vWeff[b]+(jt*2+ks)*4,4)}, {v(hb+4*ks,4)}, {v(c,4)}")

    g.label("L_tile")
    A(f"v_add_u32 {v(vBA)}, {s(sTB)}, {v(vBoff)}")
    A(f"s_sub_u32 {s(sRem)}, {s(sT3)}, {s(sTi)}")
    A(f"v_add_u32 {v(vTRA)}, {s(sTB)}, {v(vTRoff)}")
    A("s_waitcnt vmcnt(4)")
    A(f"s_cmp_ge_u32 {s(sRem)}, 2")
    A("s_cbranch_scc1 L_dataok")
    A("s_waitcnt vmcnt(2)")
    A(f"s_cmp_eq_u32 {s(sRem)}, 1")
    A("s_cbranch_scc1 L_dataok")
    A("s_waitcnt vmcnt(0)")
    g.raw("L_dataok:")
    if debug:
        A(f"s_cmp_lg_u32 {s(sTi)}, 0")
        A("s_cbranch_scc1 L_nost")
        stamp()
        g.raw("L_nost:")
    A(f"s_cmp_ge_i32 {s(sRel)}, 16")
    A("s_cbranch_scc1 L_p0")
    A(f"s_cmp_le_i32 {s(sRel)}, 0")
    A("s_cbranch_scc1 L_p1")
    A(f"v_cmp_gt_i32 vcc, {s(sRel)}, {v(vN)}")
    A(f"v_add_u32 {v(vCA)}, {CP}, {v(vC0)}")
    A(f"v_cndmask_b32 {v(vCA)}, {v(vCA)}, {v(vC0)}, vcc")
    A(f"v_cndmask_b32 {v(vBA1)}, {v(vBA)}, {v(vZoff)}, vcc")
    A(f"v_cndmask_b32 {v(vBA)}, {v(vZoff)}, {v(vBA)}, vcc")
    for jt in range(4):
        A(f"ds_read_b128 {v(vD1+4*jt,4)}, {v(vCA)} offset:{jt*64}")
    A(f"ds_read_b128 {v(vHB1,4)}, {v(vBA1)}")
    A(f"ds_read_b128 {v(vHB1+4,4)}, {v(vBA1)} offset:512")
    A(f"ds_read_b128 {v(vHB,4)}, {v(vBA)}")
    A(f"ds_read_b128 {v(vHB+4,4)}, {v(vBA)} offset:512")
    A("s_waitcnt lgkmcnt(2)")
    gemm1(1, vHB1, False)
    A("s_waitcnt lgkmcnt(0)")
    gemm1(0, vHB, False)
    A("s_branch L_fin")
    g.raw("L_p0:")
    A(f"ds_read_b128 {v(vHB,4)}, {v(vBA)}")
    A(f"ds_read_b128 {v(vHB+4,4)}, {v(vBA)} offset:512")
    A("s_waitcnt lgkmcnt(0)")
    gemm1(0, vHB, True)
    A("s_branch L_fin")
    g.raw("L_p1:")
    A(f"ds_read_b128 {v(vHB,4)}, {v(vBA)}")
    A(f"ds_read_b128 {v(vHB+4,4)}, {v(vBA)} offset:512")
    A("s_waitcnt lgkmcnt(0)")
    gemm1(1, vHB, True)
    g.raw("L_fin:")
    g.hist = [i for i in g.hist if i.kind == "mfma"][-8:]
    for dt in range(4):
        A(f"ds_read_b64_tr_b16 {v(vTRr+2*dt,2)}, {v(vTRA)} offset:{dt*256}")
    A(f"ds_read_b128 {v(vM,4)}, {v(vMA)}")
    A(f"ds_read_u16 {v(vR[0])}, {v(vRA)} offset:{1024+96}")
    A(f"ds_read_u16 {v(vR[1])}, {v(vRA)} offset:{1024+96+16}")
    for jt in range(4):
        d = vD1 + 4 * jt
        for r in range(4):
            A(f"v_exp_f32 {v(d+r)}, {v(d+r)}")
        for r in range(4):
            A(f"v_add_f32 {v(d+r)}, 1.0, {v(d+r)}")
        if jt > 0:
            p = vD1 + 4 * (jt - 1)
            A(f"v_cvt_pk_bf16_f32 {v(vH+2*(jt-1))}, {v(p)}, {v(p+1)}")
            A(f"v_cvt_pk_bf16_f32 {v(vH+2*(jt-1)+1)}, {v(p+2)}, {v(p+3)}")
        for r in range(4):
            A(f"v_rcp_f32 {v(d+r)}, {v(d+r)}")
            if jt == 2 and r == 1:
                A(f"v_mfma_f32_16x16x32_bf16 {v(vD2,4)}, {v(vH,4)}, {v(vW2,4)}, {v(vB2C,4)}")
    p = vD1 + 12
    A(f"s_add_u32 {s(sT0)}, {s(sTi)}, 3")
    A(f"v_cvt_pk_bf16_f32 {v(vH+6)}, {v(p)}, {v(p+1)}")
    A(f"v_cvt_pk_bf16_f32 {v(vH+7)}, {v(p+2)}, {v(p+3)}")
    A(f"v_add_u32 {v(vMA)}, 64, {v(vMA)}")
    A("s_waitcnt lgkmcnt(0)")
    A(f"v_mfma_f32_16x16x32_bf16 {v(vD2,4)}, {v(vH+4,4)}, {v(vW2+4,4)}, {v(vD2,4)}")
    A(f"s_cmp_ge_u32 {s(sT0)}, {s(sT)}")
    A("s_cbranch_scc1 L_nopf")
    A(f"s_mov_b32 m0, {s(sPB)}")
    A(f"v_add_u32 {v(vR[0])}, {v(vR[0])}, {v(vHC)}")
    A(f"v_add_u32 {v(vR[1])}, {v(vR[1])}, {v(vHC)}")
    A(f"buffer_load_dwordx4 {v(vR[0])}, {s(sSRD,4)}, {s(sHo)} offen nt lds")
    A("s_add_u32 m0, m0, 1024")
    A(f"v_add_u32 {v(vRA)}, 32, {v(vRA)}")
    A(f"buffer_load_dwordx4 {v(vR[1])}, {s(sSRD,4)}, {s(sHo)} offen nt lds")
    A(f"s_add_u32 {s(sPB)}, {s(sPB)}, 2048")
    A(f"s_cmp_eq_u32 {s(sT0)}, 4")
    A(f"s_cselect_b32 {s(sPB)}, {s(sOVw)}, {s(sPB)}")
    g.raw("L_nopf:")
    g.hist = [i for i in g.hist if i.kind == "mfma"][-1:]
    A(f"s_add_u32 {s(sTi)}, {s(sTi)}, 1")
    A(f"s_sub_u32 {s(sRel)}, {s(sRel)}, 16")
    A(f"s_add_u32 {s(sTB)}, {s(sTB)}, 2048")
    A(f"s_cmp_eq_u32 {s(sTi)}, 5")
    A(f"s_cselect_b32 {s(sTB)}, {s(sOVw)}, {s(sTB)}")
    for r in range(4):
        A(f"v_mul_f32 {v(vM+r)}, {v(vD2+r)}, {v(vM+r)}")
    A(f"v_cvt_pk_bf16_f32 {v(vS)}, {v(vM)}, {v(vM+1)}")
    A(f"v_cvt_pk_bf16_f32 {v(vS+1)}, {v(vM+2)}, {v(vM+3)}")
    A(f"s_cmp_lt_u32 {s(sTi)}, {s(sT)}")
    for dt in range(4):
        A(f"v_mfma_f32_16x16x16_bf16 {v(vD3+4*dt,4)}, {v(vTRr+2*dt,2)}, {v(vS,2)}, {v(vD3+4*dt,4)}")
    A("s_cbranch_scc1 L_tile")

    g.label("L_epi")
    stamp()
    vO = vD1
    for dt in range(4):
        A(f"v_cvt_pk_bf16_f32 {v(vO+2*dt)}, {v(vD3+4*dt)}, {v(vD3+4*dt+1)}")
        A(f"v_cvt_pk_bf16_f32 {v(vO+2*dt+1)}, {v(vD3+4*dt+2)}, {v(vD3+4*dt+3)}")
        if dt > 0:
            A(f"v_cndmask_b32 {v(vO)}, {v(vO)}, {v(vO+2*dt)}, {s(sSel[dt-1],2)}")
            A(f"v_cndmask_b32 {v(vO+1)}, {v(vO+1)}, {v(vO+2*dt+1)}, {s(sSel[dt-1],2)}")
    A("s_mov_b32 exec_lo, 0x0f0f0f0f")
    A("s_mov_b32 exec_hi, 0x0f0f0f0f")
    A(f"global_store_dwordx2 {v(vOA)}, {v(vO,2)}, {s(sOb,2)}")
    if debug:
        vX = P[4]
        A("s_waitcnt vmcnt(0)")
        A(f"s_memrealtime {s(sRT+2,2)}")
        A("s_waitcnt lgkmcnt(0)")
        A("s_mov_b64 exec, 1")
        for i in range(1, NST):
            A(f"s_sub_u32 {s(sST+2*i)}, {s(sST+2*i)}, {s(sST)}")
        A(f"s_lshl_b32 {s(sT0)}, s2, 3")
        A(f"s_add_u32 {s(sT0)}, {s(sT0)}, {s(sW)}")
        A(f"s_lshl_b32 {s(sT0)}, {s(sT0)}, 6")
        A(f"v_mov_b32 {v(vT0)}, {s(sT0)}")
        for i in range(4):
            A(f"v_mov_b32 {v(vX+i)}, {s(sRT+i)}")
        for i in range(1, NST):
            A(f"v_mov_b32 {v(vX+3+i)}, {s(sST+2*i)}")
        for i in range(4):
            A(f"global_store_dwordx4 {v(vT0)}, {v(vX+4*i,4)}, {s(sWS,2)} offset:{16*i}")
    g.raw("L_end:")
    g.raw("    s_endpgm")
    nv = (g.nv + 7) // 8 * 8
    assert nv <= 256, g.nv
    g.raw('.section .rodata,"a"')
    g.raw(".p2align 6")
    g.raw(f".amdhsa_kernel {KN}")
    g.raw(f"  .amdhsa_next_free_vgpr {nv}")
    g.raw(f"  .amdhsa_next_free_sgpr {max(g.ns, 32)}")
    g.raw(f"  .amdhsa_accum_offset {nv}")
    g.raw("  .amdhsa_group_segment_fixed_size 0")
    g.raw("  .amdhsa_kernarg_size 80")
    g.raw("  .amdhsa_user_sgpr_count 2")
    g.raw("  .amdhsa_user_sgpr_kernarg_segment_ptr 1")
    g.raw("  .amdhsa_system_sgpr_workgroup_id_x 1")
    g.raw("  .amdhsa_float_denorm_mode_32 3")
    g.raw("  .amdhsa_float_denorm_mode_16_64 3")
    g.raw(".end_amdhsa_kernel")
    sys.stderr.write(f"vgprs {g.nv} sgprs {g.ns} nops {g.nops} lds {LDS_BYTES} stamps {stamp_i[0]}\n")
    return g.text()


if __name__ == "__main__":
    out = sys.argv[1] if len(sys.argv) > 1 else "standalone__sequential_behavior_din__recsys.s"
    open(out, "w").write(gen(debug=("--debug" in sys.argv), opts=[a[2:] for a in sys.argv if a.startswith("--")]))
```

```python
import sys, struct
sys.path.insert(0, "tools")
from asmgen import Gen, v, s

KN = "standalone__sequential_behavior_din__recsys_kernel"


def f32bits(x):
    return struct.unpack("<I", struct.pack("<f", x))[0]


def bf16_rne(x):
    u = f32bits(x)
    return ((u + 0x7FFF + ((u >> 16) & 1)) >> 16) & 0xFFFF


def bf16_to_f(h):
    return struct.unpack("<f", struct.pack("<I", h << 16))[0]


KAPPA = -1.4426950408889634
K1 = bf16_rne(KAPPA)
K2 = bf16_rne(KAPPA - bf16_to_f(K1))
KB = f"{f32bits(KAPPA):#x}"

HB = 0
PB = 81920
TL = PB + 24576
WV = PB + 27648
DBW = 114688
WB = 122880
CB = 139264
CP = 272
TP = 160
ZB = 147968
MB = 148992
LDS_BYTES = MB + 8 * 1280


def gen(debug=False, opts=()):
    g = Gen()
    A = g
    hdr = open("standalone__sequential_behavior_din__recsys.s.ref").read().split("\n")
    for ln in hdr:
        if ln.startswith("; @launch"):
            break
        g.raw(ln)
    g.raw(f"; @launch grid=(256,1,1) block=(512,1,1) lds={LDS_BYTES}")
    g.raw('.amdgcn_target "amdgcn-amd-amdhsa--gfx950"')
    g.raw(".text")
    g.raw(f".globl {KN}")
    g.raw(".p2align 8")
    g.raw(f".type {KN},@function")
    g.raw(f"{KN}:")

    g.ns = 4
    sP = g.sreg(16)
    sTG, sHI, sMK, sW1, sB1, sW2, sB2, sOUT = [sP + 2 * i for i in range(8)]
    sSRD = g.sreg(4)
    sW = g.sreg(); sB0 = g.sreg(); sH = g.sreg(); sJ = g.sreg()
    sT0 = g.sreg(); sT1 = g.sreg(); sHo = g.sreg(); sB2v = g.sreg()
    sMb = g.sreg(2); sTb = g.sreg(2); sWb = g.sreg(2); sOb = g.sreg(2)
    sA0 = g.sreg(2); sA1 = g.sreg(2); sTmp2 = g.sreg(2)
    sSel = [g.sreg(2) for _ in range(3)]
    sN0 = g.sreg(); sT = g.sreg(); sT3 = g.sreg()
    sScr = g.sreg(); sHBw = g.sreg(); sOVw = g.sreg()
    sTi = g.sreg(); sRel = g.sreg(); sTB = g.sreg(); sPB = g.sreg(); sRem = g.sreg()

    g.nv = 1
    vN = g.vreg(); vHC = g.vreg(); vC0 = g.vreg(); vBoff = g.vreg(); vZoff = g.vreg(); vTRoff = g.vreg()
    vMA = g.vreg(); vRA = g.vreg(); vOA = g.vreg()
    vCA = g.vreg(); vBA = g.vreg(); vBA1 = g.vreg(); vTRA = g.vreg(); vR = [g.vreg(), g.vreg()]
    vWtr = [g.vreg(), g.vreg()]; vCtr = [g.vreg(), g.vreg()]; vTtA = g.vreg(); vWw = g.vreg(); vCw = g.vreg()
    vDR = g.vreg(); vCS = g.vreg(); vWVr = g.vreg(); vB1 = g.vreg(); vT0 = g.vreg(); vT1 = g.vreg()
    vRq = [g.vreg() for _ in range(8)]
    vS = g.vreg(2)
    vMq = g.vreg(4); vKI = g.vreg(4)
    vWeff = [g.vreg(32), g.vreg(32)]
    vW2 = g.vreg(8)
    vD3 = g.vreg(16)
    vB2C = g.vreg(4)
    pool = g.vreg(108)
    P = [pool + 4 * i for i in range(27)]
    vD1 = P[0]; vHB = P[4]; vHB1 = P[6]; vTRr = P[8]; vH = P[10]; vD2 = P[12]; vM = P[13]
    vCr = [[P[16], P[17], P[18], P[19]], [P[20], P[21], P[24], P[25]]]
    aWR, aWd = vCA, [vBA, vBA1]
    daq = [[P[b * 4 + tau] for tau in range(4)] for b in range(2)]
    dq = [(P[8 + 2 * i], P[9 + 2 * i]) for i in range(3)]
    opq = [(P[14 + 2 * i], P[15 + 2 * i]) for i in range(5)]
    vTv = P[8]
    vCt = P[26]
    pCA = [P[10], P[11]]
    pWB = [[P[12], P[13]], [P[15], P[17]]]
    vTt, vTn = P[19], P[21]
    vPD = [P[22], P[23], P[24]]
    e = iter(range(pool + 40, pool + 108))
    vZ4 = next(e); next(e); next(e); next(e)
    vLane, vG, vMk, vTk, vMe, vMo, vL4, vL16, vS8, vWo, vG8, vRow, vMoff, vTLw = [next(e) for _ in range(14)]
    vPe, vPo, vU0, vU1, vU2, vU3, vDW, vTh, vTlo, vG2, vGh, vN8 = [next(e) for _ in range(12)]
    vAd = next(e)
    if vAd % 2:
        vAd = next(e)
    next(e)

    NST = 13
    if debug:
        sST = g.sreg(2 * NST, 4); sRT = g.sreg(4, 4); sWS = g.sreg(2)
    stamp_i = [0]

    def stamp():
        if debug:
            A(f"s_memtime {s(sST+2*stamp_i[0],2)}")
            stamp_i[0] += 1

    def gather(q):
        A(f"buffer_load_dwordx4 {v(vRq[q])}, {s(sSRD,4)}, {s(sHo)} offen nt lds")
        if q < 7:
            A("s_add_u32 m0, m0, 1024")

    if debug:
        A(f"s_memrealtime {s(sRT,2)}")
        A(f"s_load_dwordx2 {s(sWS,2)}, s[0:1], 72")
    stamp()
    A("s_cmp_ge_u32 s2, 256")
    A("s_cbranch_scc1 L_end")
    A(f"s_load_dwordx16 {s(sP,16)}, s[0:1], 0")
    A(f"v_lshrrev_b32 {v(vT0)}, 6, v0")
    A(f"v_and_b32 {v(vLane)}, 63, v0")
    A(f"v_readfirstlane_b32 {s(sW)}, {v(vT0)}")
    A(f"v_and_b32 {v(vN)}, 15, v0")
    A(f"v_lshrrev_b32 {v(vG)}, 4, {v(vLane)}")
    A(f"v_lshlrev_b32 {v(vL4)}, 2, {v(vLane)}")
    A(f"v_mov_b32 {v(vMk)}, 0")
    A(f"v_and_b32 {v(vT1)}, 1, {v(vLane)}")
    A(f"v_lshlrev_b32 {v(vT1)}, 4, {v(vT1)}")
    A(f"v_lshl_add_u32 {v(vHC)}, {v(vG)}, 5, {v(vT1)}")
    A(f"v_lshrrev_b32 {v(vS8)}, 1, {v(vN)}")
    A(f"s_lshr_b32 {s(sT0)}, {s(sW)}, 1")
    A(f"s_xor_b32 {s(sT0)}, {s(sT0)}, {s(sW)}")
    A(f"s_and_b32 {s(sT0)}, {s(sT0)}, 1")
    A(f"s_lshl_b32 {s(sT0)}, {s(sT0)}, 2")
    A(f"v_xor_b32 {v(vT1)}, {s(sT0)}, {v(vS8)}")
    A(f"v_lshl_add_u32 {v(vWo)}, {v(vT1)}, 7, {v(vHC)}")
    A(f"s_lshl_b32 {s(sB0)}, s2, 4")
    A(f"s_lshl_b32 {s(sT0)}, {s(sW)}, 1")
    A(f"s_add_u32 {s(sB0)}, {s(sB0)}, {s(sT0)}")
    A(f"s_lshl_b32 {s(sT1)}, {s(sW)}, 10")
    A(f"s_mul_i32 {s(sT0)}, {s(sB0)}, 100")
    A(f"s_lshl_b32 {s(sHo)}, {s(sB0)}, 7")
    A(f"s_lshr_b32 {s(sH)}, {s(sW)}, 2")
    A(f"s_and_b32 {s(sJ)}, {s(sW)}, 3")
    A(f"s_mul_i32 {s(sScr)}, {s(sW)}, 1280")
    A(f"s_add_u32 {s(sScr)}, {s(sScr)}, {MB}")
    A(f"s_mul_i32 {s(sHBw)}, {s(sW)}, 10240")
    A(f"s_lshl_b32 {s(sOVw)}, {s(sW)}, 12")
    A(f"s_add_u32 {s(sOVw)}, {s(sOVw)}, {PB}")
    for r in range(4):
        A(f"v_mov_b32 {v(vZ4+r)}, 0")
    A(f"v_lshlrev_b32 {v(vL16)}, 4, {v(vLane)}")
    A(f"v_add_u32 {v(vT0)}, {s(sScr)}, {v(vL16)}")
    A(f"v_add_u32 {v(vT1)}, {s(sScr)}, {v(vL4)}")
    if "early" in opts:
        A(f"s_cmp_lt_u32 {s(sW)}, 4")
        A("s_cbranch_scc1 L_np0")
        A("s_setprio 1")
        g.raw("L_np0:")
    A(f"s_mov_b32 m0, {WV}")
    A(f"s_cmp_lg_u32 {s(sW)}, 7")
    A("s_waitcnt lgkmcnt(0)")
    stamp()
    A("s_cbranch_scc1 L_nowv")
    A("s_mov_b32 exec_hi, 0")
    A(f"global_load_lds_dword {v(vL4)}, {s(sW2,2)}")
    A(f"s_mov_b32 m0, {WV+128}")
    A("s_nop 0")
    A(f"global_load_lds_dword {v(vL4)}, {s(sB1,2)}")
    A("s_mov_b32 exec_hi, -1")
    g.raw("L_nowv:")
    A(f"s_add_u32 {s(sMb)}, {s(sMK)}, {s(sT0)}")
    A(f"s_addc_u32 {s(sMb+1)}, {s(sMK+1)}, 0")
    A("s_mov_b32 exec_hi, 0x3ffff")
    A(f"global_load_dword {v(vMk)}, {v(vL4)}, {s(sMb,2)}")
    A("s_mov_b32 exec_hi, -1")
    A(f"s_add_u32 {s(sTb)}, {s(sTG)}, {s(sHo)}")
    A(f"s_addc_u32 {s(sTb+1)}, {s(sTG+1)}, 0")
    A(f"global_load_dword {v(vTk)}, {v(vL4)}, {s(sTb,2)}")
    A(f"s_add_u32 {s(sWb)}, {s(sW1)}, {s(sT1)}")
    A(f"s_addc_u32 {s(sWb+1)}, {s(sW1+1)}, 0")
    A(f"s_add_u32 m0, {s(sT1)}, {PB}")
    for mat in range(4):
        A(f"global_load_lds_dwordx4 {v(vWo)}, {s(sWb,2)}")
        if mat < 3:
            A(f"s_add_u32 {s(sWb)}, {s(sWb)}, 8192")
            A(f"s_addc_u32 {s(sWb+1)}, {s(sWb+1)}, 0")
            A(f"s_add_u32 m0, m0, {8192 if mat < 2 else 16384}")
    A(f"s_load_dword {s(sB2v)}, {s(sB2,2)}, 0")
    A(f"ds_write_b128 {v(vT0)}, {v(vZ4,4)}")
    A(f"ds_write_b32 {v(vT1)}, {v(vZ4)} offset:1024")
    A(f"s_add_u32 {s(sOb)}, {s(sOUT)}, {s(sHo)}")
    A(f"s_addc_u32 {s(sOb+1)}, {s(sOUT+1)}, 0")
    A(f"s_mul_i32 {s(sHo)}, {s(sB0)}, 6400")
    A(f"s_mov_b32 {s(sSRD)}, {s(sHI)}")
    A(f"s_and_b32 {s(sSRD+1)}, {s(sHI+1)}, 0xffff")
    A(f"s_mov_b32 {s(sSRD+2)}, 26214400")
    A(f"s_mov_b32 {s(sSRD+3)}, 0x00020000")
    A(f"v_lshl_add_u32 {v(vRA)}, {v(vS8)}, 1, {s(sScr)}")
    A(f"v_lshlrev_b32 {v(vRow)}, 8, {v(vLane)}")
    A(f"v_cmp_lt_u32 vcc, 24, {v(vLane)}")
    A(f"v_mov_b32 {v(vT1)}, 448")
    A(f"v_lshlrev_b32 {v(vG8)}, 3, {v(vG)}")
    A(f"v_cndmask_b32 {v(vMoff)}, 0, {v(vT1)}, vcc")
    A(f"v_add_u32 {v(vMoff)}, {s(sScr)}, {v(vMoff)}")
    A(f"v_add_u32 {v(vU2)}, 128, {v(vRow)}")
    A(f"s_lshl_b32 {s(sT0)}, {s(sW)}, 7")
    A(f"s_add_u32 {s(sT0)}, {s(sT0)}, {ZB}")
    A(f"v_add_u32 {v(vT0)}, {s(sT0)}, {v(vL4)}")
    A("s_mov_b32 exec_hi, 0")
    A(f"ds_write_b32 {v(vT0)}, {v(vZ4)}")
    A("s_mov_b32 exec_hi, -1")
    A(f"v_lshrrev_b32 {v(vGh)}, 1, {v(vG)}")
    A(f"v_and_b32 {v(vG2)}, 1, {v(vG)}")
    A(f"v_lshlrev_b32 {v(vN8)}, 3, {v(vN)}")
    A(f"s_add_u32 {s(sT0)}, {s(sHBw)}, 8192")
    A(f"v_add_u32 {v(vDW)}, {s(sT0)}, {v(vL4)}")
    A(f"v_lshl_add_u32 {v(vT0)}, {v(vGh)}, 8, {s(sT0)}")
    A(f"v_lshrrev_b32 {v(vT1)}, 2, {v(vN)}")
    A(f"v_lshl_add_u32 {v(vT0)}, {v(vT1)}, 4, {v(vT0)}")
    A(f"v_bfe_u32 {v(vT1)}, {v(vN)}, 1, 1")
    A(f"v_lshl_add_u32 {v(vDR)}, {v(vT1)}, 2, {v(vT0)}")
    A(f"s_mul_i32 {s(sT0)}, {s(sW)}, {2*TP}")
    A(f"s_add_u32 {s(sT0)}, {s(sT0)}, {TL}")
    A(f"v_mad_u32_u24 {v(vTLw)}, {v(vGh)}, {TP-128}, {v(vL4)}")
    A(f"v_add_u32 {v(vTLw)}, {s(sT0)}, {v(vTLw)}")
    A(f"v_lshrrev_b32 {v(vT1)}, 3, {v(vN)}")
    A(f"v_cmp_eq_u32 vcc, {v(vT1)}, {v(vG2)}")
    A(f"v_and_b32 {v(vU0)}, 1, {v(vN)}")
    A(f"v_lshlrev_b32 {v(vU0)}, 4, {v(vU0)}")
    A(f"v_mov_b32 {v(vU1)}, 0xffff")
    A(f"v_lshlrev_b32 {v(vU0)}, {v(vU0)}, {v(vU1)}")
    A(f"v_cndmask_b32 {v(vU0)}, 0, {v(vU0)}, vcc")
    A(f"v_bfe_u32 {v(vU1)}, {v(vN)}, 1, 2")
    A(f"v_cmp_gt_u32 {s(sTmp2,2)}, 2, {v(vG)}")
    A(f"v_mov_b32 {v(vT0)}, {K2 | (K2 << 16):#x}")
    A(f"v_mov_b32 {v(vU3)}, {K1 | (K1 << 16):#x}")
    A(f"v_cndmask_b32 {v(vT0)}, {v(vT0)}, {v(vU3)}, {s(sTmp2,2)}")
    for q in range(4):
        A(f"v_cmp_eq_u32 vcc, {q}, {v(vU1)}")
        A(f"v_cndmask_b32 {v(vMq+q)}, 0, {v(vU0)}, vcc")
    for q in range(4):
        A(f"v_and_b32 {v(vKI+q)}, {v(vT0)}, {v(vMq+q)}")
    A(f"v_mul_u32_u24 {v(vU0)}, 448, {v(vT1)}")
    A(f"v_lshl_add_u32 {v(vU0)}, {v(vG)}, 4, {v(vU0)}")
    A(f"v_add_u32 {v(vMA)}, {s(sScr)}, {v(vU0)}")
    A(f"v_lshl_add_u32 {v(vOA)}, {v(vT1)}, 7, {v(vG8)}")
    A(f"v_and_b32 {v(vU0)}, 3, {v(vN)}")
    A(f"v_lshl_add_u32 {v(vOA)}, {v(vU0)}, 5, {v(vOA)}")
    for i in range(3):
        A(f"v_cmp_eq_u32 {s(sSel[i],2)}, {i+1}, {v(vU0)}")
    A(f"v_lshlrev_b32 {v(vU0)}, 8, {v(vGh)}")
    A(f"v_lshl_add_u32 {v(vU0)}, {v(vG2)}, 4, {v(vU0)}")
    A(f"v_and_b32 {v(vU1)}, 7, {v(vN)}")
    A(f"v_lshl_add_u32 {v(vU0)}, {v(vU1)}, 5, {v(vU0)}")
    A(f"v_add_u32 {v(vZoff)}, {ZB}, {v(vU0)}")
    A(f"v_lshl_add_u32 {v(vBoff)}, {v(vT1)}, 10, {v(vU0)}")

    A(f"v_lshl_add_u32 {v(vT0)}, {v(vG2)}, 11, {v(vN8)}")
    A(f"v_lshl_add_u32 {v(vT0)}, {v(vG2)}, 7, {v(vT0)}")
    A(f"s_lshl_b32 {s(sT0)}, {s(sH)}, 12")
    A(f"s_lshl_b32 {s(sT1)}, {s(sJ)}, 8")
    A(f"s_add_u32 {s(sT0)}, {s(sT0)}, {s(sT1)}")
    A(f"s_add_u32 {s(sT0)}, {s(sT0)}, {PB}")
    A(f"v_add_u32 {v(vWtr[0])}, {s(sT0)}, {v(vT0)}")
    A(f"v_xor_b32 {v(vWtr[1])}, 128, {v(vWtr[0])}")
    A(f"v_add_u32 {v(aWd[0])}, {DBW}, {v(vT0)}")
    A(f"v_xor_b32 {v(aWd[1])}, 128, {v(aWd[0])}")
    A(f"v_xor_b32 {v(vT0)}, {v(vGh)}, {v(vG2)}")
    A(f"v_lshl_add_u32 {v(vT0)}, {v(vT0)}, 7, {v(vN8)}")
    A(f"v_lshl_add_u32 {v(vT0)}, {v(vG)}, 10, {v(vT0)}")
    A(f"v_add_u32 {v(vCtr[0])}, {s(sT0)}, {v(vT0)}")
    A(f"v_xor_b32 {v(vCtr[1])}, 128, {v(vCtr[0])}")
    A(f"s_lshl_b32 {s(sT0)}, {s(sH)}, 6")
    A(f"s_add_u32 {s(sT0)}, {s(sT0)}, {TL}")
    A(f"v_lshl_add_u32 {v(vT0)}, {v(vG)}, 4, {s(sT0)}")
    A(f"v_mul_u32_u24 {v(vTtA)}, {TP}, {v(vN)}")
    A(f"v_add_u32 {v(vTtA)}, {v(vTtA)}, {v(vT0)}")
    A(f"v_add_u32 {v(aWR)}, {WB}, {v(vL16)}")
    A(f"s_lshl_b32 {s(sT0)}, {s(sH)}, 13")
    A(f"s_lshl_b32 {s(sT1)}, {s(sJ)}, 10")
    A(f"s_add_u32 {s(sT0)}, {s(sT0)}, {s(sT1)}")
    A(f"v_add_u32 {v(vWw)}, {s(sT0)}, {v(aWR)}")
    A(f"s_mul_i32 {s(sT0)}, {s(sH)}, {16*CP}")
    A(f"s_lshl_b32 {s(sT1)}, {s(sJ)}, 6")
    A(f"s_add_u32 {s(sT0)}, {s(sT0)}, {s(sT1)}")
    A(f"s_add_u32 {s(sT0)}, {s(sT0)}, {CB}")
    A(f"v_lshl_add_u32 {v(vCw)}, {v(vG)}, 4, {s(sT0)}")
    A(f"v_mul_u32_u24 {v(vT0)}, {CP}, {v(vN)}")
    A(f"v_add_u32 {v(vCw)}, {v(vCw)}, {v(vT0)}")
    A(f"s_mul_i32 {s(sT0)}, {s(sW)}, {2*CP}")
    A(f"s_add_u32 {s(sT0)}, {s(sT0)}, {CB}")
    A(f"v_lshl_add_u32 {v(vCS)}, {v(vLane)}, 3, {s(sT0)}")
    A(f"v_lshl_add_u32 {v(vCS)}, {v(vGh)}, 4, {v(vCS)}")
    A(f"v_lshl_add_u32 {v(vC0)}, {v(vG)}, 4, {s(sT0)}")
    A(f"v_add_u32 {v(vWVr)}, {WV}, {v(vG8)}")
    A(f"v_and_b32 {v(vB1)}, 124, {v(vL4)}")
    A(f"v_add_u32 {v(vB1)}, {WV+128}, {v(vB1)}")
    A(f"v_lshl_add_u32 {v(vTRoff)}, {v(vG2)}, 7, {v(vN8)}")
    A(f"v_lshl_add_u32 {v(vTRoff)}, {v(vGh)}, 10, {v(vTRoff)}")
    for dt in range(4):
        A(f"v_mfma_f32_16x16x16_bf16 {v(vD3+4*dt,4)}, {v(vZ4,2)}, {v(vZ4,2)}, 0")
    A("s_waitcnt vmcnt(5)")
    stamp()
    A(f"v_lshlrev_b32 {v(vMe)}, 16, {v(vMk)}")
    A(f"v_and_b32 {v(vMo)}, 0xffff0000, {v(vMk)}")
    A(f"v_cmp_neq_f32 {s(sA0,2)}, 0, {v(vMe)}")
    A(f"v_cmp_neq_f32 {s(sA1,2)}, 0, {v(vMo)}")
    A(f"s_mov_b32 m0, {s(sHBw)}")
    A(f"v_mbcnt_lo_u32_b32 {v(vPe)}, {s(sA0)}, 0")
    A(f"v_mbcnt_hi_u32_b32 {v(vPe)}, {s(sA0+1)}, {v(vPe)}")
    A(f"v_mbcnt_lo_u32_b32 {v(vPe)}, {s(sA1)}, {v(vPe)}")
    A(f"v_mbcnt_hi_u32_b32 {v(vPe)}, {s(sA1+1)}, {v(vPe)}")
    A(f"v_addc_co_u32 {v(vPo)}, vcc, {v(vPe)}, 0, {s(sA0,2)}")
    A(f"v_lshl_add_u32 {v(vU0)}, {v(vPe)}, 1, {s(sScr)}")
    A(f"v_lshl_add_u32 {v(vU1)}, {v(vPo)}, 1, {s(sScr)}")
    A(f"s_mov_b64 exec, {s(sA0,2)}")
    A(f"ds_write_b16 {v(vU0)}, {v(vRow)} offset:1024")
    A(f"s_mov_b64 exec, {s(sA1,2)}")
    A(f"ds_write_b16 {v(vU1)}, {v(vU2)} offset:1024")
    A("s_mov_b64 exec, -1")
    tags = []
    for q in range(8):
        A(f"ds_read_u16 {v(vRq[q])}, {v(vRA)} offset:{1024+16*q}")
        tags.append(g.mark())
    A(f"v_lshl_add_u32 {v(vU0)}, {v(vPe)}, 2, {v(vMoff)}")
    A(f"v_lshl_add_u32 {v(vU1)}, {v(vPo)}, 2, {v(vMoff)}")
    A(f"s_mov_b64 exec, {s(sA0,2)}")
    A(f"ds_write_b32 {v(vU0)}, {v(vMe)}")
    A(f"s_mov_b64 exec, {s(sA1,2)}")
    A(f"ds_write_b32 {v(vU1)}, {v(vMo)}")
    A("s_mov_b64 exec, -1")
    for q in range(2):
        g.wait_ds(tags[q])
        A(f"v_add_u32 {v(vRq[q])}, {v(vRq[q])}, {v(vHC)}")
        gather(q)
    stamp()
    A("s_waitcnt vmcnt(6)")
    A(f"ds_write_b32 {v(vTLw)}, {v(vTk)}")
    A(f"v_lshlrev_b32 {v(vU0)}, 16, {v(vTk)}")
    A(f"v_and_b32 {v(vU1)}, 0xffff0000, {v(vTk)}")
    A(f"v_mul_f32 {v(vU0)}, {KB}, {v(vU0)}")
    A(f"v_mul_f32 {v(vU1)}, {KB}, {v(vU1)}")
    A(f"v_cvt_pk_bf16_f32 {v(vTh)}, {v(vU0)}, {v(vU1)}")
    A(f"v_lshlrev_b32 {v(vU2)}, 16, {v(vTh)}")
    A(f"v_and_b32 {v(vU3)}, 0xffff0000, {v(vTh)}")
    A(f"v_sub_f32 {v(vU0)}, {v(vU0)}, {v(vU2)}")
    A(f"v_sub_f32 {v(vU1)}, {v(vU1)}, {v(vU3)}")
    A(f"v_cvt_pk_bf16_f32 {v(vTlo)}, {v(vU0)}, {v(vU1)}")
    A(f"ds_write_b32 {v(vDW)}, {v(vTh)}")
    A(f"ds_write_b32 {v(vDW)}, {v(vTlo)} offset:256")
    for b in range(2):
        for th in range(2):
            A(f"ds_read2_b32 {v(vTv+b*4+2*th,2)}, {v(vDR)} offset0:{b*32+th*16} offset1:{b*32+th*16+2}")
    tgv = g.mark()
    g.wait_ds(tags[7])
    for q in range(2, 8):
        A(f"v_add_u32 {v(vRq[q])}, {v(vRq[q])}, {v(vHC)}")
    A(f"s_and_b32 {s(sT0)}, {s(sA0)}, 0x1ffffff")
    A(f"s_and_b32 {s(sT1)}, {s(sA1)}, 0x1ffffff")
    A(f"s_bcnt1_i32_b32 {s(sN0)}, {s(sT0)}")
    A(f"s_bcnt1_i32_b32 {s(sT1)}, {s(sT1)}")
    A(f"s_add_u32 {s(sN0)}, {s(sN0)}, {s(sT1)}")
    A(f"s_bcnt1_i32_b64 {s(sT)}, {s(sA0,2)}")
    A(f"s_bcnt1_i32_b64 {s(sT1)}, {s(sA1,2)}")
    A(f"s_add_u32 {s(sT)}, {s(sT)}, {s(sT1)}")
    A(f"s_add_u32 {s(sT)}, {s(sT)}, 15")
    A(f"s_lshr_b32 {s(sT)}, {s(sT)}, 4")
    A(f"s_max_u32 {s(sT3)}, {s(sT)}, 4")
    A(f"s_sub_u32 {s(sT3)}, {s(sT3)}, 1")
    def make_da(b, tau):
        for q in range(4):
            A(f"v_and_b32 {v(daq[b][tau]+q)}, {v(vTv+b*4+tau)}, {v(vMq+q)}")

    if "dyn" in opts:
        A(f"s_lshl_b32 {s(sT0)}, {s(sW)}, 2")
        A(f"s_add_u32 {s(sT0)}, {s(sT0)}, {WV+256}")
        A(f"v_mov_b32 {v(vU0)}, {s(sT0)}")
        A(f"v_mov_b32 {v(vU1)}, {s(sT)}")
        A(f"v_xor_b32 {v(vR[0])}, 16, {v(vU0)}")
        A(f"ds_write_b32 {v(vU0)}, {v(vU1)}")
    g.wait_ds(tgv)
    for tau in range(4):
        for b in range(2):
            make_da(b, tau)
    A("s_waitcnt vmcnt(2) lgkmcnt(0)")
    stamp()
    A("s_barrier")
    stamp()
    A(f"ds_read_b128 {v(vTt,4)}, {v(vTtA)}")
    for mi, off in enumerate((8192, 16384)):
        for hh in range(2):
            A(f"ds_read_b64_tr_b16 {v(pCA[mi]+2*hh,2)}, {v(vCtr[hh])} offset:{off}")
    tg2 = g.mark()
    tg1 = []
    for t0 in range(2):
        for mi in range(2):
            for hh in range(2):
                A(f"ds_read_b64_tr_b16 {v(pWB[t0][mi]+2*hh,2)}, {v(vWtr[t0^hh])} offset:{mi*16384+hh*1024}")
        tg1.append(g.mark())
    for q in range(4):
        A(f"ds_read_b64 {v(vW2+2*q,2)}, {v(vWVr)} offset:{32*q}")
    A(f"ds_read_b32 {v(vB1)}, {v(vB1)}")
    if "glate" not in opts:
        gather(2)
    A(f"s_lshl_b32 {s(sB2v)}, {s(sB2v)}, 16")
    A(f"s_mov_b32 {s(sT0)}, 0x80008000")

    g.wait_ds(tg2)
    for r in range(4):
        A(f"v_xor_b32 {v(vTn+r)}, {s(sT0)}, {v(vTt+r)}")
    A(f"v_mfma_f32_16x16x32_bf16 {v(vPD[2],4)}, {v(pCA[0],4)}, {v(vTt,4)}, 0")
    A(f"v_mfma_f32_16x16x32_bf16 {v(vPD[2],4)}, {v(pCA[1],4)}, {v(vTn,4)}, {v(vPD[2],4)}")
    for t0 in range(2):
        g.wait_ds(tg1[t0])
        A(f"v_mfma_f32_16x16x32_bf16 {v(vPD[t0],4)}, {v(vKI,4)}, {v(pWB[t0][0],4)}, 0")
        A(f"v_mfma_f32_16x16x32_bf16 {v(vPD[t0],4)}, {v(vKI,4)}, {v(pWB[t0][1],4)}, {v(vPD[t0],4)}")

    L = 4
    R = L + 1
    tt = {}

    def issue_wd(k):
        tau, jt = k // 4, k % 4
        wd, c = opq[k % R]
        for hh in range(2):
            A(f"ds_read_b64_tr_b16 {v(wd+2*hh,2)}, {v(aWd[(tau&1)^hh])} offset:{(tau>>1)*4096+hh*1024+jt*256}")

    def issue_c(k):
        tau, jt = k // 4, k % 4
        wd, c = opq[k % R]
        A(f"ds_read_b128 {v(c,4)}, {v(aWR)} offset:{(tau*4+jt)*1024}")
        tt[k] = g.mark()

    A(f"ds_write_b128 {v(vCw)}, {v(vPD[2],4)}")
    A(f"ds_write_b128 {v(vWw)}, {v(vPD[0],4)}")
    A(f"ds_write_b128 {v(vWw)}, {v(vPD[1],4)} offset:4096")
    tgw = g.mark()
    for k in range(L):
        issue_wd(k)
    if "glate" not in opts:
        gather(3)
    for r in range(4):
        A(f"v_mov_b32 {v(vB2C+r)}, {s(sB2v)}")
    stamp()
    g.wait_ds(tgw)
    A("s_barrier")
    stamp()
    for k in range(L):
        issue_c(k)
    A(f"ds_read_b64 {v(vCt,2)}, {v(vCS)}")
    A(f"ds_read_b64 {v(vCt+2,2)}, {v(vCS)} offset:{16*CP}")
    if "dyn" in opts:
        A(f"ds_read_b32 {v(vR[0])}, {v(vR[0])}")
    tgc = g.mark()
    gather(2 if "glate" in opts else 4)

    def cvts(k):
        tau, jt = k // 4, k % 4
        for b in range(2):
            d = dq[k % 3][b]
            o = vWeff[b] + (jt * 2 + (tau >> 1)) * 4 + 2 * (tau & 1)
            A(f"v_cvt_pk_bf16_f32 {v(o)}, {v(d)}, {v(d+1)}")
            A(f"v_cvt_pk_bf16_f32 {v(o+1)}, {v(d+2)}, {v(d+3)}")

    stag = [o for o in opts if o.startswith("stag")]
    if stag:
        A(f"s_cmp_ge_u32 {s(sW)}, 4")
        A("s_cselect_b64 vcc, -1, 0")
        if "hi" in stag[0]:
            A("s_cbranch_scc1 L_sp")
            A("s_setprio 2")
            g.raw("L_sp:")
    for k in range(16):
        tau, jt = k // 4, k % 4
        g.wait_ds(tt[k])
        wd, c = opq[k % R]
        for b in range(2):
            A(f"v_mfma_f32_16x16x32_bf16 {v(dq[k%3][b],4)}, {v(daq[b][tau],4)}, {v(wd,4)}, {v(c,4)}")
        kn = k + L
        if kn < 16:
            issue_wd(kn)
            issue_c(kn)
        if "glate" in opts and k in (2, 4, 6):
            gather(2 + k // 2)
        if k == 1:
            if "glate" not in opts:
                gather(5)
            g.wait_ds(tgc)
            A(f"v_lshlrev_b32 {v(vT0)}, 16, {v(vB1)}")
            A(f"v_and_b32 {v(vT1)}, 0xffff0000, {v(vB1)}")
            A(f"v_add_f32 {v(vCt)}, {v(vCt)}, {v(vCt+2)}")
            A(f"v_add_f32 {v(vCt+1)}, {v(vCt+1)}, {v(vCt+3)}")
            A(f"v_add_f32 {v(vCt)}, {v(vCt)}, {v(vT0)}")
            A(f"v_add_f32 {v(vCt+1)}, {v(vCt+1)}, {v(vT1)}")
            A(f"v_mul_f32 {v(vCt)}, {KB}, {v(vCt)}")
            A(f"v_mul_f32 {v(vCt+1)}, {KB}, {v(vCt+1)}")
            A(f"ds_write_b64 {v(vCS)}, {v(vCt,2)}")
        if k == (15 if 'clate' in opts else 14):
            for b in range(2):
                for j2 in range(4):
                    A(f"ds_read_b128 {v(vCr[b][j2],4)}, {v(vC0)} offset:{b*CP+j2*64}")
        if k >= 1:
            cvts(k - 1)
        if stag and k < 12:
            A(f"s_cbranch_vccz L_sk{k}")
            A("s_waitcnt lgkmcnt(0)")
            g.raw(f"L_sk{k}:")
    if stag and "hi" in stag[0]:
        A("s_setprio 0")
    A(f"s_mov_b32 {s(sTi)}, 0")
    A(f"s_mov_b32 {s(sRel)}, {s(sN0)}")
    A(f"s_mov_b32 {s(sTB)}, {s(sHBw)}")
    A(f"s_add_u32 {s(sPB)}, {s(sHBw)}, {4*2048}")
    gather(6)
    cvts(15)
    gather(7)
    stamp()
    if "dyn" in opts:
        A(f"v_readfirstlane_b32 {s(sT0)}, {v(vR[0])}")
        A(f"s_lshl_b32 {s(sT1)}, {s(sT)}, 1")
        A(f"s_add_u32 {s(sT1)}, {s(sT1)}, {s(sH)}")
        A(f"s_lshl_b32 {s(sT0)}, {s(sT0)}, 1")
        A(f"s_cmp_le_u32 {s(sT1)}, {s(sT0)}")
        A("s_cbranch_scc1 L_np")
        A("s_setprio 1")
        g.raw("L_np:")
    if "prio" in opts:
        A(f"s_cmp_lt_u32 {s(sW)}, 4")
        A("s_cbranch_scc1 L_np")
        A("s_setprio 1")
        g.raw("L_np:")
    if "prio0" in opts:
        A(f"s_cmp_ge_u32 {s(sW)}, 4")
        A("s_cbranch_scc1 L_np")
        A("s_setprio 1")
        g.raw("L_np:")
    A(f"s_cmp_eq_u32 {s(sT)}, 0")
    g.branch("s_cbranch_scc1 L_epi")

    def gemm1(b, hb, cinit):
        for jt in range(4):
            for ks in range(2):
                c = vCr[b][jt] if (cinit and ks == 0) else vD1 + 4 * jt
                A(f"v_mfma_f32_16x16x32_bf16 {v(vD1+4*jt,4)}, {v(vWeff[b]+(jt*2+ks)*4,4)}, {v(hb+4*ks,4)}, {v(c,4)}")

    def emit_loop(fast):
        X = "F" if fast else "G"
        g.label(f"L_tile{X}")
        A(f"v_add_u32 {v(vBA)}, {s(sTB)}, {v(vBoff)}")
        A(f"v_add_u32 {v(vTRA)}, {s(sTB)}, {v(vTRoff)}")
        if not fast:
            A(f"s_sub_u32 {s(sRem)}, {s(sT3)}, {s(sTi)}")
            A("s_waitcnt vmcnt(6)")
            A(f"s_cmp_ge_u32 {s(sRem)}, 3")
            A("s_cbranch_scc1 L_dataok")
            A("s_waitcnt vmcnt(4)")
            A(f"s_cmp_eq_u32 {s(sRem)}, 2")
            A("s_cbranch_scc1 L_dataok")
            A("s_waitcnt vmcnt(2)")
            A(f"s_cmp_eq_u32 {s(sRem)}, 1")
            A("s_cbranch_scc1 L_dataok")
            A("s_waitcnt vmcnt(0)")
            g.raw("L_dataok:")
        A(f"s_cmp_ge_i32 {s(sRel)}, 16")
        A(f"s_cbranch_scc1 L_p0{X}")
        A(f"s_cmp_le_i32 {s(sRel)}, 0")
        A(f"s_cbranch_scc1 L_p1{X}")
        A(f"v_cmp_gt_i32 vcc, {s(sRel)}, {v(vN)}")
        A(f"v_add_u32 {v(vCA)}, {CP}, {v(vC0)}")
        A(f"v_cndmask_b32 {v(vCA)}, {v(vCA)}, {v(vC0)}, vcc")
        A(f"v_cndmask_b32 {v(vBA1)}, {v(vBA)}, {v(vZoff)}, vcc")
        A(f"v_cndmask_b32 {v(vBA)}, {v(vZoff)}, {v(vBA)}, vcc")
        for jt in range(4):
            A(f"ds_read_b128 {v(vD1+4*jt,4)}, {v(vCA)} offset:{jt*64}")
        A(f"ds_read_b128 {v(vHB1,4)}, {v(vBA1)}")
        A(f"ds_read_b128 {v(vHB1+4,4)}, {v(vBA1)} offset:512")
        A(f"ds_read_b128 {v(vHB,4)}, {v(vBA)}")
        A(f"ds_read_b128 {v(vHB+4,4)}, {v(vBA)} offset:512")
        A("s_waitcnt lgkmcnt(2)")
        gemm1(1, vHB1, False)
        A("s_waitcnt lgkmcnt(0)")
        gemm1(0, vHB, False)
        A(f"s_branch L_fin{X}")
        g.raw(f"L_p0{X}:")
        A(f"ds_read_b128 {v(vHB,4)}, {v(vBA)}")
        A(f"ds_read_b128 {v(vHB+4,4)}, {v(vBA)} offset:512")
        A("s_waitcnt lgkmcnt(0)")
        gemm1(0, vHB, True)
        A(f"s_branch L_fin{X}")
        g.raw(f"L_p1{X}:")
        A(f"ds_read_b128 {v(vHB,4)}, {v(vBA)}")
        A(f"ds_read_b128 {v(vHB+4,4)}, {v(vBA)} offset:512")
        A("s_waitcnt lgkmcnt(0)")
        gemm1(1, vHB, True)
        g.raw(f"L_fin{X}:")
        g.hist = [i for i in g.hist if i.kind == "mfma"][-8:]
        for dt in range(4):
            A(f"ds_read_b64_tr_b16 {v(vTRr+2*dt,2)}, {v(vTRA)} offset:{dt*256}")
        A(f"ds_read_b128 {v(vM,4)}, {v(vMA)}")
        if not fast:
            A(f"ds_read_u16 {v(vR[0])}, {v(vRA)} offset:{1024+128}")
            A(f"ds_read_u16 {v(vR[1])}, {v(vRA)} offset:{1024+128+16}")
        for jt in range(4):
            d = vD1 + 4 * jt
            for r in range(4):
                A(f"v_exp_f32 {v(d+r)}, {v(d+r)}")
            for r in range(4):
                A(f"v_add_f32 {v(d+r)}, 1.0, {v(d+r)}")
            if jt > 0:
                p = vD1 + 4 * (jt - 1)
                A(f"v_cvt_pk_bf16_f32 {v(vH+2*(jt-1))}, {v(p)}, {v(p+1)}")
                A(f"v_cvt_pk_bf16_f32 {v(vH+2*(jt-1)+1)}, {v(p+2)}, {v(p+3)}")
            for r in range(4):
                A(f"v_rcp_f32 {v(d+r)}, {v(d+r)}")
                if jt == 2 and r == 1:
                    A(f"v_mfma_f32_16x16x32_bf16 {v(vD2,4)}, {v(vH,4)}, {v(vW2,4)}, {v(vB2C,4)}")
        p = vD1 + 12
        A(f"v_add_u32 {v(vMA)}, 64, {v(vMA)}")
        A(f"v_cvt_pk_bf16_f32 {v(vH+6)}, {v(p)}, {v(p+1)}")
        A(f"v_cvt_pk_bf16_f32 {v(vH+7)}, {v(p+2)}, {v(p+3)}")
        if fast:
            A(f"s_add_u32 {s(sTi)}, {s(sTi)}, 1")
            A("s_waitcnt lgkmcnt(0)")
            A(f"v_mfma_f32_16x16x32_bf16 {v(vD2,4)}, {v(vH+4,4)}, {v(vW2+4,4)}, {v(vD2,4)}")
            A(f"s_sub_u32 {s(sRel)}, {s(sRel)}, 16")
            A(f"s_add_u32 {s(sTB)}, {s(sTB)}, 2048")
            A("s_waitcnt vmcnt(2)")
            A(f"s_cmp_lg_u32 {s(sTi)}, 3")
            A("s_cbranch_scc1 L_w3")
            A("s_waitcnt vmcnt(0)")
            g.raw("L_w3:")
            g.hist = g.hist[:-1]
        else:
            A(f"s_add_u32 {s(sT0)}, {s(sTi)}, 4")
            A("s_waitcnt lgkmcnt(0)")
            A(f"v_mfma_f32_16x16x32_bf16 {v(vD2,4)}, {v(vH+4,4)}, {v(vW2+4,4)}, {v(vD2,4)}")
            A(f"s_cmp_ge_u32 {s(sT0)}, {s(sT)}")
            A("s_cbranch_scc1 L_nopf")
            A(f"s_mov_b32 m0, {s(sPB)}")
            A(f"v_add_u32 {v(vR[0])}, {v(vR[0])}, {v(vHC)}")
            A(f"v_add_u32 {v(vR[1])}, {v(vR[1])}, {v(vHC)}")
            A(f"buffer_load_dwordx4 {v(vR[0])}, {s(sSRD,4)}, {s(sHo)} offen nt lds")
            A("s_add_u32 m0, m0, 1024")
            A(f"v_add_u32 {v(vRA)}, 32, {v(vRA)}")
            A(f"buffer_load_dwordx4 {v(vR[1])}, {s(sSRD,4)}, {s(sHo)} offen nt lds")
            A(f"s_add_u32 {s(sPB)}, {s(sPB)}, 2048")
            A(f"s_cmp_eq_u32 {s(sT0)}, 4")
            A(f"s_cselect_b32 {s(sPB)}, {s(sOVw)}, {s(sPB)}")
            g.raw("L_nopf:")
            g.hist = [i for i in g.hist if i.kind == "mfma"][-1:]
            A(f"s_add_u32 {s(sTi)}, {s(sTi)}, 1")
            A(f"s_sub_u32 {s(sRel)}, {s(sRel)}, 16")
            A(f"s_add_u32 {s(sTB)}, {s(sTB)}, 2048")
            A(f"s_cmp_eq_u32 {s(sTi)}, 5")
            A(f"s_cselect_b32 {s(sTB)}, {s(sOVw)}, {s(sTB)}")
        A(f"s_cmp_lt_u32 {s(sTi)}, {s(sT)}")
        for r in range(4):
            A(f"v_mul_f32 {v(vM+r)}, {v(vD2+r)}, {v(vM+r)}")
        A(f"v_cvt_pk_bf16_f32 {v(vS)}, {v(vM)}, {v(vM+1)}")
        A(f"v_cvt_pk_bf16_f32 {v(vS+1)}, {v(vM+2)}, {v(vM+3)}")
        for dt in range(4):
            A(f"v_mfma_f32_16x16x16_bf16 {v(vD3+4*dt,4)}, {v(vTRr+2*dt,2)}, {v(vS,2)}, {v(vD3+4*dt,4)}")
        A(f"s_cbranch_scc1 L_tile{X}")

    A(f"s_cmp_gt_u32 {s(sT)}, 4")
    A("s_cbranch_scc1 L_tileG")
    A("s_waitcnt vmcnt(6)")
    stamp()
    emit_loop(True)

    g.label("L_epi")
    stamp()
    vO = vD1
    for dt in range(4):
        A(f"v_cvt_pk_bf16_f32 {v(vO+2*dt)}, {v(vD3+4*dt)}, {v(vD3+4*dt+1)}")
        A(f"v_cvt_pk_bf16_f32 {v(vO+2*dt+1)}, {v(vD3+4*dt+2)}, {v(vD3+4*dt+3)}")
        if dt > 0:
            A(f"v_cndmask_b32 {v(vO)}, {v(vO)}, {v(vO+2*dt)}, {s(sSel[dt-1],2)}")
            A(f"v_cndmask_b32 {v(vO+1)}, {v(vO+1)}, {v(vO+2*dt+1)}, {s(sSel[dt-1],2)}")
    A("s_mov_b32 exec_lo, 0x0f0f0f0f")
    A("s_mov_b32 exec_hi, 0x0f0f0f0f")
    A(f"global_store_dwordx2 {v(vOA)}, {v(vO,2)}, {s(sOb,2)}")
    if debug:
        vX = P[4]
        A("s_waitcnt vmcnt(0)")
        A(f"s_memrealtime {s(sRT+2,2)}")
        A("s_waitcnt lgkmcnt(0)")
        A("s_mov_b64 exec, 1")
        for i in range(1, NST):
            A(f"s_sub_u32 {s(sST+2*i)}, {s(sST+2*i)}, {s(sST)}")
        A(f"s_lshl_b32 {s(sT0)}, s2, 3")
        A(f"s_add_u32 {s(sT0)}, {s(sT0)}, {s(sW)}")
        A(f"s_lshl_b32 {s(sT0)}, {s(sT0)}, 6")
        A(f"v_mov_b32 {v(vT0)}, {s(sT0)}")
        for i in range(4):
            A(f"v_mov_b32 {v(vX+i)}, {s(sRT+i)}")
        for i in range(1, NST):
            A(f"v_mov_b32 {v(vX+3+i)}, {s(sST+2*i)}")
        for i in range(4):
            A(f"global_store_dwordx4 {v(vT0)}, {v(vX+4*i,4)}, {s(sWS,2)} offset:{16*i}")
    g.raw("L_end:")
    g.raw("    s_endpgm")
    g.hist = []
    emit_loop(False)
    g.flush()
    A("s_branch L_epi")
    nv = (g.nv + 7) // 8 * 8
    assert nv <= 256, g.nv
    g.raw('.section .rodata,"a"')
    g.raw(".p2align 6")
    g.raw(f".amdhsa_kernel {KN}")
    g.raw(f"  .amdhsa_next_free_vgpr {nv}")
    g.raw(f"  .amdhsa_next_free_sgpr {max(g.ns, 32)}")
    g.raw(f"  .amdhsa_accum_offset {nv}")
    g.raw("  .amdhsa_group_segment_fixed_size 0")
    g.raw("  .amdhsa_kernarg_size 80")
    g.raw("  .amdhsa_user_sgpr_count 2")
    g.raw("  .amdhsa_user_sgpr_kernarg_segment_ptr 1")
    g.raw("  .amdhsa_system_sgpr_workgroup_id_x 1")
    g.raw("  .amdhsa_float_denorm_mode_32 3")
    g.raw("  .amdhsa_float_denorm_mode_16_64 3")
    g.raw(".end_amdhsa_kernel")
    sys.stderr.write(f"vgprs {g.nv} sgprs {g.ns} nops {g.nops} lds {LDS_BYTES} stamps {stamp_i[0]}\n")
    return g.text()


if __name__ == "__main__":
    out = sys.argv[1] if len(sys.argv) > 1 else "standalone__sequential_behavior_din__recsys.s"
    open(out, "w").write(gen(debug=("--debug" in sys.argv), opts=[a[2:] for a in sys.argv if a.startswith("--")]))
```

```python
import sys, struct
sys.path.insert(0, "tools")
from asmgen import Gen, v, s

KN = "standalone__sequential_behavior_din__recsys_kernel"


def f32bits(x):
    return struct.unpack("<I", struct.pack("<f", x))[0]


def bf16_rne(x):
    u = f32bits(x)
    return ((u + 0x7FFF + ((u >> 16) & 1)) >> 16) & 0xFFFF


def bf16_to_f(h):
    return struct.unpack("<f", struct.pack("<I", h << 16))[0]


KAPPA = -1.4426950408889634
K1 = bf16_rne(KAPPA)
K2 = bf16_rne(KAPPA - bf16_to_f(K1))
KB = f"{f32bits(KAPPA):#x}"

HB = 0
PB = 81920
TL = PB + 24576
WV = PB + 27648
DBW = 114688
WB = 122880
CB = 139264
CP = 272
TP = 160
ZB = 147968
MB = 148992
LDS_BYTES = MB + 8 * 1280


def gen(debug=False, opts=()):
    g = Gen()
    A = g
    hdr = open("standalone__sequential_behavior_din__recsys.s.ref").read().split("\n")
    for ln in hdr:
        if ln.startswith("; @launch"):
            break
        g.raw(ln)
    g.raw(f"; @launch grid=(256,1,1) block=(512,1,1) lds={LDS_BYTES}")
    g.raw('.amdgcn_target "amdgcn-amd-amdhsa--gfx950"')
    g.raw(".text")
    g.raw(f".globl {KN}")
    g.raw(".p2align 8")
    g.raw(f".type {KN},@function")
    g.raw(f"{KN}:")

    g.ns = 4
    sP = g.sreg(16)
    sTG, sHI, sMK, sW1, sB1, sW2, sB2, sOUT = [sP + 2 * i for i in range(8)]
    sSRD = g.sreg(4)
    sW = g.sreg(); sB0 = g.sreg(); sH = g.sreg(); sJ = g.sreg()
    sT0 = g.sreg(); sT1 = g.sreg(); sHo = g.sreg(); sB2v = g.sreg()
    sMb = g.sreg(2); sTb = g.sreg(2); sWb = g.sreg(2); sOb = g.sreg(2)
    sA0 = g.sreg(2); sA1 = g.sreg(2); sTmp2 = g.sreg(2)
    sSel = [g.sreg(2) for _ in range(3)]
    sN0 = g.sreg(); sT = g.sreg(); sT3 = g.sreg()
    sScr = g.sreg(); sHBw = g.sreg(); sOVw = g.sreg()
    sTi = g.sreg(); sRel = g.sreg(); sTB = g.sreg(); sPB = g.sreg(); sRem = g.sreg()

    g.nv = 1
    vN = g.vreg(); vHC = g.vreg(); vC0 = g.vreg(); vBoff = g.vreg(); vZoff = g.vreg(); vTRoff = g.vreg()
    vMA = g.vreg(); vRA = g.vreg(); vOA = g.vreg()
    vCA = g.vreg(); vBA = g.vreg(); vBA1 = g.vreg(); vTRA = g.vreg(); vR = [g.vreg(), g.vreg()]
    vWtr = [g.vreg(), g.vreg()]; vCtr = [g.vreg(), g.vreg()]; vTtA = g.vreg(); vWw = g.vreg(); vCw = g.vreg()
    vDR = g.vreg(); vCS = g.vreg(); vWVr = g.vreg(); vB1 = g.vreg(); vT0 = g.vreg(); vT1 = g.vreg()
    vRq = [g.vreg() for _ in range(6)]
    vS = g.vreg(2)
    vMq = g.vreg(4); vKI = g.vreg(4)
    vWeff = [g.vreg(32), g.vreg(32)]
    vW2 = g.vreg(8)
    vD3 = g.vreg(16)
    vB2C = g.vreg(4)
    pool = g.vreg(108)
    P = [pool + 4 * i for i in range(27)]
    vD1 = P[0]; vHB = P[4]; vHB1 = P[6]; vTRr = P[8]; vH = P[10]; vD2 = P[12]; vM = P[13]
    vCr = [[P[16], P[17], P[18], P[19]], [P[20], P[21], P[24], P[25]]]
    aWR, aWd = vCA, [vBA, vBA1]
    daq = [[P[b * 4 + tau] for tau in range(4)] for b in range(2)]
    dq = [(P[8 + 2 * i], P[9 + 2 * i]) for i in range(3)]
    opq = [(P[14 + 2 * i], P[15 + 2 * i]) for i in range(5)]
    vTv = P[8]
    vCt = P[26]
    pCA = [P[10], P[11]]
    pWB = [[P[12], P[13]], [P[15], P[17]]]
    vTt, vTn = P[19], P[21]
    vPD = [P[22], P[23], P[24]]
    e = iter(range(pool + 40, pool + 108))
    vZ4 = next(e); next(e); next(e); next(e)
    vLane, vG, vMk, vTk, vMe, vMo, vL4, vL16, vS8, vWo, vG8, vRow, vMoff, vTLw = [next(e) for _ in range(14)]
    vPe, vPo, vU0, vU1, vU2, vU3, vDW, vTh, vTlo, vG2, vGh, vN8 = [next(e) for _ in range(12)]
    vAd = next(e)
    if vAd % 2:
        vAd = next(e)
    next(e)

    NST = 13
    if debug:
        sST = g.sreg(2 * NST, 4); sRT = g.sreg(4, 4); sWS = g.sreg(2)
    stamp_i = [0]

    def stamp():
        if debug:
            A(f"s_memtime {s(sST+2*stamp_i[0],2)}")
            stamp_i[0] += 1

    def gather(q):
        A(f"buffer_load_dwordx4 {v(vRq[q])}, {s(sSRD,4)}, {s(sHo)} offen nt lds")
        if q < 5:
            A("s_add_u32 m0, m0, 1024")

    if debug:
        A(f"s_memrealtime {s(sRT,2)}")
        A(f"s_load_dwordx2 {s(sWS,2)}, s[0:1], 72")
    stamp()
    A("s_cmp_ge_u32 s2, 256")
    A("s_cbranch_scc1 L_end")
    A(f"s_load_dwordx16 {s(sP,16)}, s[0:1], 0")
    A(f"v_lshrrev_b32 {v(vT0)}, 6, v0")
    A(f"v_and_b32 {v(vLane)}, 63, v0")
    A(f"v_readfirstlane_b32 {s(sW)}, {v(vT0)}")
    A(f"v_and_b32 {v(vN)}, 15, v0")
    A(f"v_lshrrev_b32 {v(vG)}, 4, {v(vLane)}")
    A(f"v_lshlrev_b32 {v(vL4)}, 2, {v(vLane)}")
    A(f"v_mov_b32 {v(vMk)}, 0")
    A(f"v_and_b32 {v(vT1)}, 1, {v(vLane)}")
    A(f"v_lshlrev_b32 {v(vT1)}, 4, {v(vT1)}")
    A(f"v_lshl_add_u32 {v(vHC)}, {v(vG)}, 5, {v(vT1)}")
    A(f"v_lshrrev_b32 {v(vS8)}, 1, {v(vN)}")
    A(f"s_lshr_b32 {s(sT0)}, {s(sW)}, 1")
    A(f"s_xor_b32 {s(sT0)}, {s(sT0)}, {s(sW)}")
    A(f"s_and_b32 {s(sT0)}, {s(sT0)}, 1")
    A(f"s_lshl_b32 {s(sT0)}, {s(sT0)}, 2")
    A(f"v_xor_b32 {v(vT1)}, {s(sT0)}, {v(vS8)}")
    A(f"v_lshl_add_u32 {v(vWo)}, {v(vT1)}, 7, {v(vHC)}")
    A(f"s_lshl_b32 {s(sB0)}, s2, 4")
    A(f"s_lshl_b32 {s(sT0)}, {s(sW)}, 1")
    A(f"s_add_u32 {s(sB0)}, {s(sB0)}, {s(sT0)}")
    A(f"s_lshl_b32 {s(sT1)}, {s(sW)}, 10")
    A(f"s_mul_i32 {s(sT0)}, {s(sB0)}, 100")
    A(f"s_lshl_b32 {s(sHo)}, {s(sB0)}, 7")
    A(f"s_lshr_b32 {s(sH)}, {s(sW)}, 2")
    A(f"s_and_b32 {s(sJ)}, {s(sW)}, 3")
    A(f"s_mul_i32 {s(sScr)}, {s(sW)}, 1280")
    A(f"s_add_u32 {s(sScr)}, {s(sScr)}, {MB}")
    A(f"s_mul_i32 {s(sHBw)}, {s(sW)}, 10240")
    A(f"s_lshl_b32 {s(sOVw)}, {s(sW)}, 12")
    A(f"s_add_u32 {s(sOVw)}, {s(sOVw)}, {PB}")
    for r in range(4):
        A(f"v_mov_b32 {v(vZ4+r)}, 0")
    A(f"v_lshlrev_b32 {v(vL16)}, 4, {v(vLane)}")
    A(f"v_add_u32 {v(vT0)}, {s(sScr)}, {v(vL16)}")
    A(f"v_add_u32 {v(vT1)}, {s(sScr)}, {v(vL4)}")
    if "early" in opts:
        A(f"s_cmp_lt_u32 {s(sW)}, 4")
        A("s_cbranch_scc1 L_np0")
        A("s_setprio 1")
        g.raw("L_np0:")
    A(f"s_mov_b32 m0, {WV}")
    A(f"s_cmp_lg_u32 {s(sW)}, 7")
    A("s_waitcnt lgkmcnt(0)")
    stamp()
    A("s_cbranch_scc1 L_nowv")
    A("s_mov_b32 exec_hi, 0")
    A(f"global_load_lds_dword {v(vL4)}, {s(sW2,2)}")
    A(f"s_mov_b32 m0, {WV+128}")
    A("s_nop 0")
    A(f"global_load_lds_dword {v(vL4)}, {s(sB1,2)}")
    A("s_mov_b32 exec_hi, -1")
    g.raw("L_nowv:")
    A(f"s_add_u32 {s(sMb)}, {s(sMK)}, {s(sT0)}")
    A(f"s_addc_u32 {s(sMb+1)}, {s(sMK+1)}, 0")
    A("s_mov_b32 exec_hi, 0x3ffff")
    A(f"global_load_dword {v(vMk)}, {v(vL4)}, {s(sMb,2)}")
    A("s_mov_b32 exec_hi, -1")
    A(f"s_add_u32 {s(sTb)}, {s(sTG)}, {s(sHo)}")
    A(f"s_addc_u32 {s(sTb+1)}, {s(sTG+1)}, 0")
    A(f"global_load_dword {v(vTk)}, {v(vL4)}, {s(sTb,2)}")
    A(f"s_add_u32 {s(sWb)}, {s(sW1)}, {s(sT1)}")
    A(f"s_addc_u32 {s(sWb+1)}, {s(sW1+1)}, 0")
    A(f"s_add_u32 m0, {s(sT1)}, {PB}")
    for mat in range(4):
        A(f"global_load_lds_dwordx4 {v(vWo)}, {s(sWb,2)}")
        if mat < 3:
            A(f"s_add_u32 {s(sWb)}, {s(sWb)}, 8192")
            A(f"s_addc_u32 {s(sWb+1)}, {s(sWb+1)}, 0")
            A(f"s_add_u32 m0, m0, {8192 if mat < 2 else 16384}")
    A(f"s_load_dword {s(sB2v)}, {s(sB2,2)}, 0")
    A(f"ds_write_b128 {v(vT0)}, {v(vZ4,4)}")
    A(f"ds_write_b32 {v(vT1)}, {v(vZ4)} offset:1024")
    A(f"s_add_u32 {s(sOb)}, {s(sOUT)}, {s(sHo)}")
    A(f"s_addc_u32 {s(sOb+1)}, {s(sOUT+1)}, 0")
    A(f"s_mul_i32 {s(sHo)}, {s(sB0)}, 6400")
    A(f"s_mov_b32 {s(sSRD)}, {s(sHI)}")
    A(f"s_and_b32 {s(sSRD+1)}, {s(sHI+1)}, 0xffff")
    A(f"s_mov_b32 {s(sSRD+2)}, 26214400")
    A(f"s_mov_b32 {s(sSRD+3)}, 0x00020000")
    A(f"v_lshl_add_u32 {v(vRA)}, {v(vS8)}, 1, {s(sScr)}")
    A(f"v_lshlrev_b32 {v(vRow)}, 8, {v(vLane)}")
    A(f"v_cmp_lt_u32 vcc, 24, {v(vLane)}")
    A(f"v_mov_b32 {v(vT1)}, 448")
    A(f"v_lshlrev_b32 {v(vG8)}, 3, {v(vG)}")
    A(f"v_cndmask_b32 {v(vMoff)}, 0, {v(vT1)}, vcc")
    A(f"v_add_u32 {v(vMoff)}, {s(sScr)}, {v(vMoff)}")
    A(f"v_add_u32 {v(vU2)}, 128, {v(vRow)}")
    A(f"s_lshl_b32 {s(sT0)}, {s(sW)}, 7")
    A(f"s_add_u32 {s(sT0)}, {s(sT0)}, {ZB}")
    A(f"v_add_u32 {v(vT0)}, {s(sT0)}, {v(vL4)}")
    A("s_mov_b32 exec_hi, 0")
    A(f"ds_write_b32 {v(vT0)}, {v(vZ4)}")
    A("s_mov_b32 exec_hi, -1")
    A(f"v_lshrrev_b32 {v(vGh)}, 1, {v(vG)}")
    A(f"v_and_b32 {v(vG2)}, 1, {v(vG)}")
    A(f"v_lshlrev_b32 {v(vN8)}, 3, {v(vN)}")
    A(f"s_add_u32 {s(sT0)}, {s(sHBw)}, 6144")
    A(f"v_add_u32 {v(vDW)}, {s(sT0)}, {v(vL4)}")
    A(f"v_lshl_add_u32 {v(vT0)}, {v(vGh)}, 8, {s(sT0)}")
    A(f"v_lshrrev_b32 {v(vT1)}, 2, {v(vN)}")
    A(f"v_lshl_add_u32 {v(vT0)}, {v(vT1)}, 4, {v(vT0)}")
    A(f"v_bfe_u32 {v(vT1)}, {v(vN)}, 1, 1")
    A(f"v_lshl_add_u32 {v(vDR)}, {v(vT1)}, 2, {v(vT0)}")
    A(f"s_mul_i32 {s(sT0)}, {s(sW)}, {2*TP}")
    A(f"s_add_u32 {s(sT0)}, {s(sT0)}, {TL}")
    A(f"v_mad_u32_u24 {v(vTLw)}, {v(vGh)}, {TP-128}, {v(vL4)}")
    A(f"v_add_u32 {v(vTLw)}, {s(sT0)}, {v(vTLw)}")
    A(f"v_lshrrev_b32 {v(vT1)}, 3, {v(vN)}")
    A(f"v_cmp_eq_u32 vcc, {v(vT1)}, {v(vG2)}")
    A(f"v_and_b32 {v(vU0)}, 1, {v(vN)}")
    A(f"v_lshlrev_b32 {v(vU0)}, 4, {v(vU0)}")
    A(f"v_mov_b32 {v(vU1)}, 0xffff")
    A(f"v_lshlrev_b32 {v(vU0)}, {v(vU0)}, {v(vU1)}")
    A(f"v_cndmask_b32 {v(vU0)}, 0, {v(vU0)}, vcc")
    A(f"v_bfe_u32 {v(vU1)}, {v(vN)}, 1, 2")
    A(f"v_cmp_gt_u32 {s(sTmp2,2)}, 2, {v(vG)}")
    A(f"v_mov_b32 {v(vT0)}, {K2 | (K2 << 16):#x}")
    A(f"v_mov_b32 {v(vU3)}, {K1 | (K1 << 16):#x}")
    A(f"v_cndmask_b32 {v(vT0)}, {v(vT0)}, {v(vU3)}, {s(sTmp2,2)}")
    for q in range(4):
        A(f"v_cmp_eq_u32 vcc, {q}, {v(vU1)}")
        A(f"v_cndmask_b32 {v(vMq+q)}, 0, {v(vU0)}, vcc")
    for q in range(4):
        A(f"v_and_b32 {v(vKI+q)}, {v(vT0)}, {v(vMq+q)}")
    A(f"v_mul_u32_u24 {v(vU0)}, 448, {v(vT1)}")
    A(f"v_lshl_add_u32 {v(vU0)}, {v(vG)}, 4, {v(vU0)}")
    A(f"v_add_u32 {v(vMA)}, {s(sScr)}, {v(vU0)}")
    A(f"v_lshl_add_u32 {v(vOA)}, {v(vT1)}, 7, {v(vG8)}")
    A(f"v_and_b32 {v(vU0)}, 3, {v(vN)}")
    A(f"v_lshl_add_u32 {v(vOA)}, {v(vU0)}, 5, {v(vOA)}")
    for i in range(3):
        A(f"v_cmp_eq_u32 {s(sSel[i],2)}, {i+1}, {v(vU0)}")
    A(f"v_lshlrev_b32 {v(vU0)}, 8, {v(vGh)}")
    A(f"v_lshl_add_u32 {v(vU0)}, {v(vG2)}, 4, {v(vU0)}")
    A(f"v_and_b32 {v(vU1)}, 7, {v(vN)}")
    A(f"v_lshl_add_u32 {v(vU0)}, {v(vU1)}, 5, {v(vU0)}")
    A(f"v_add_u32 {v(vZoff)}, {ZB}, {v(vU0)}")
    A(f"v_lshl_add_u32 {v(vBoff)}, {v(vT1)}, 10, {v(vU0)}")

    A(f"v_lshl_add_u32 {v(vT0)}, {v(vG2)}, 11, {v(vN8)}")
    A(f"v_lshl_add_u32 {v(vT0)}, {v(vG2)}, 7, {v(vT0)}")
    A(f"s_lshl_b32 {s(sT0)}, {s(sH)}, 12")
    A(f"s_lshl_b32 {s(sT1)}, {s(sJ)}, 8")
    A(f"s_add_u32 {s(sT0)}, {s(sT0)}, {s(sT1)}")
    A(f"s_add_u32 {s(sT0)}, {s(sT0)}, {PB}")
    A(f"v_add_u32 {v(vWtr[0])}, {s(sT0)}, {v(vT0)}")
    A(f"v_xor_b32 {v(vWtr[1])}, 128, {v(vWtr[0])}")
    A(f"v_add_u32 {v(aWd[0])}, {DBW}, {v(vT0)}")
    A(f"v_xor_b32 {v(aWd[1])}, 128, {v(aWd[0])}")
    A(f"v_xor_b32 {v(vT0)}, {v(vGh)}, {v(vG2)}")
    A(f"v_lshl_add_u32 {v(vT0)}, {v(vT0)}, 7, {v(vN8)}")
    A(f"v_lshl_add_u32 {v(vT0)}, {v(vG)}, 10, {v(vT0)}")
    A(f"v_add_u32 {v(vCtr[0])}, {s(sT0)}, {v(vT0)}")
    A(f"v_xor_b32 {v(vCtr[1])}, 128, {v(vCtr[0])}")
    A(f"s_lshl_b32 {s(sT0)}, {s(sH)}, 6")
    A(f"s_add_u32 {s(sT0)}, {s(sT0)}, {TL}")
    A(f"v_lshl_add_u32 {v(vT0)}, {v(vG)}, 4, {s(sT0)}")
    A(f"v_mul_u32_u24 {v(vTtA)}, {TP}, {v(vN)}")
    A(f"v_add_u32 {v(vTtA)}, {v(vTtA)}, {v(vT0)}")
    A(f"v_add_u32 {v(aWR)}, {WB}, {v(vL16)}")
    A(f"s_lshl_b32 {s(sT0)}, {s(sH)}, 13")
    A(f"s_lshl_b32 {s(sT1)}, {s(sJ)}, 10")
    A(f"s_add_u32 {s(sT0)}, {s(sT0)}, {s(sT1)}")
    A(f"v_add_u32 {v(vWw)}, {s(sT0)}, {v(aWR)}")
    A(f"s_mul_i32 {s(sT0)}, {s(sH)}, {16*CP}")
    A(f"s_lshl_b32 {s(sT1)}, {s(sJ)}, 6")
    A(f"s_add_u32 {s(sT0)}, {s(sT0)}, {s(sT1)}")
    A(f"s_add_u32 {s(sT0)}, {s(sT0)}, {CB}")
    A(f"v_lshl_add_u32 {v(vCw)}, {v(vG)}, 4, {s(sT0)}")
    A(f"v_mul_u32_u24 {v(vT0)}, {CP}, {v(vN)}")
    A(f"v_add_u32 {v(vCw)}, {v(vCw)}, {v(vT0)}")
    A(f"s_mul_i32 {s(sT0)}, {s(sW)}, {2*CP}")
    A(f"s_add_u32 {s(sT0)}, {s(sT0)}, {CB}")
    A(f"v_lshl_add_u32 {v(vCS)}, {v(vLane)}, 3, {s(sT0)}")
    A(f"v_lshl_add_u32 {v(vCS)}, {v(vGh)}, 4, {v(vCS)}")
    A(f"v_lshl_add_u32 {v(vC0)}, {v(vG)}, 4, {s(sT0)}")
    A(f"v_add_u32 {v(vWVr)}, {WV}, {v(vG8)}")
    A(f"v_and_b32 {v(vB1)}, 124, {v(vL4)}")
    A(f"v_add_u32 {v(vB1)}, {WV+128}, {v(vB1)}")
    A(f"v_lshl_add_u32 {v(vTRoff)}, {v(vG2)}, 7, {v(vN8)}")
    A(f"v_lshl_add_u32 {v(vTRoff)}, {v(vGh)}, 10, {v(vTRoff)}")
    for dt in range(4):
        A(f"v_mfma_f32_16x16x16_bf16 {v(vD3+4*dt,4)}, {v(vZ4,2)}, {v(vZ4,2)}, 0")
    A("s_waitcnt vmcnt(5)")
    stamp()
    A(f"v_lshlrev_b32 {v(vMe)}, 16, {v(vMk)}")
    A(f"v_and_b32 {v(vMo)}, 0xffff0000, {v(vMk)}")
    A(f"v_cmp_neq_f32 {s(sA0,2)}, 0, {v(vMe)}")
    A(f"v_cmp_neq_f32 {s(sA1,2)}, 0, {v(vMo)}")
    A(f"s_mov_b32 m0, {s(sHBw)}")
    A(f"v_mbcnt_lo_u32_b32 {v(vPe)}, {s(sA0)}, 0")
    A(f"v_mbcnt_hi_u32_b32 {v(vPe)}, {s(sA0+1)}, {v(vPe)}")
    A(f"v_mbcnt_lo_u32_b32 {v(vPe)}, {s(sA1)}, {v(vPe)}")
    A(f"v_mbcnt_hi_u32_b32 {v(vPe)}, {s(sA1+1)}, {v(vPe)}")
    A(f"v_addc_co_u32 {v(vPo)}, vcc, {v(vPe)}, 0, {s(sA0,2)}")
    A(f"v_lshl_add_u32 {v(vU0)}, {v(vPe)}, 1, {s(sScr)}")
    A(f"v_lshl_add_u32 {v(vU1)}, {v(vPo)}, 1, {s(sScr)}")
    A(f"s_mov_b64 exec, {s(sA0,2)}")
    A(f"ds_write_b16 {v(vU0)}, {v(vRow)} offset:1024")
    A(f"s_mov_b64 exec, {s(sA1,2)}")
    A(f"ds_write_b16 {v(vU1)}, {v(vU2)} offset:1024")
    A("s_mov_b64 exec, -1")
    tags = []
    for q in range(6):
        A(f"ds_read_u16 {v(vRq[q])}, {v(vRA)} offset:{1024+16*q}")
        tags.append(g.mark())
    A(f"v_lshl_add_u32 {v(vU0)}, {v(vPe)}, 2, {v(vMoff)}")
    A(f"v_lshl_add_u32 {v(vU1)}, {v(vPo)}, 2, {v(vMoff)}")
    A(f"s_mov_b64 exec, {s(sA0,2)}")
    A(f"ds_write_b32 {v(vU0)}, {v(vMe)}")
    A(f"s_mov_b64 exec, {s(sA1,2)}")
    A(f"ds_write_b32 {v(vU1)}, {v(vMo)}")
    A("s_mov_b64 exec, -1")
    for q in range(2):
        g.wait_ds(tags[q])
        A(f"v_add_u32 {v(vRq[q])}, {v(vRq[q])}, {v(vHC)}")
        gather(q)
    stamp()
    A("s_waitcnt vmcnt(6)")
    A(f"ds_write_b32 {v(vTLw)}, {v(vTk)}")
    A(f"v_lshlrev_b32 {v(vU0)}, 16, {v(vTk)}")
    A(f"v_and_b32 {v(vU1)}, 0xffff0000, {v(vTk)}")
    A(f"v_mul_f32 {v(vU0)}, {KB}, {v(vU0)}")
    A(f"v_mul_f32 {v(vU1)}, {KB}, {v(vU1)}")
    A(f"v_cvt_pk_bf16_f32 {v(vTh)}, {v(vU0)}, {v(vU1)}")
    A(f"v_lshlrev_b32 {v(vU2)}, 16, {v(vTh)}")
    A(f"v_and_b32 {v(vU3)}, 0xffff0000, {v(vTh)}")
    A(f"v_sub_f32 {v(vU0)}, {v(vU0)}, {v(vU2)}")
    A(f"v_sub_f32 {v(vU1)}, {v(vU1)}, {v(vU3)}")
    A(f"v_cvt_pk_bf16_f32 {v(vTlo)}, {v(vU0)}, {v(vU1)}")
    A(f"ds_write_b32 {v(vDW)}, {v(vTh)}")
    A(f"ds_write_b32 {v(vDW)}, {v(vTlo)} offset:256")
    for b in range(2):
        for th in range(2):
            A(f"ds_read2_b32 {v(vTv+b*4+2*th,2)}, {v(vDR)} offset0:{b*32+th*16} offset1:{b*32+th*16+2}")
    tgv = g.mark()
    g.wait_ds(tags[5])
    for q in range(2, 6):
        A(f"v_add_u32 {v(vRq[q])}, {v(vRq[q])}, {v(vHC)}")
    A(f"s_and_b32 {s(sT0)}, {s(sA0)}, 0x1ffffff")
    A(f"s_and_b32 {s(sT1)}, {s(sA1)}, 0x1ffffff")
    A(f"s_bcnt1_i32_b32 {s(sN0)}, {s(sT0)}")
    A(f"s_bcnt1_i32_b32 {s(sT1)}, {s(sT1)}")
    A(f"s_add_u32 {s(sN0)}, {s(sN0)}, {s(sT1)}")
    A(f"s_bcnt1_i32_b64 {s(sT)}, {s(sA0,2)}")
    A(f"s_bcnt1_i32_b64 {s(sT1)}, {s(sA1,2)}")
    A(f"s_add_u32 {s(sT)}, {s(sT)}, {s(sT1)}")
    A(f"s_add_u32 {s(sT)}, {s(sT)}, 15")
    A(f"s_lshr_b32 {s(sT)}, {s(sT)}, 4")
    A(f"s_max_u32 {s(sT3)}, {s(sT)}, 3")
    A(f"s_sub_u32 {s(sT3)}, {s(sT3)}, 1")
    def make_da(b, tau):
        for q in range(4):
            A(f"v_and_b32 {v(daq[b][tau]+q)}, {v(vTv+b*4+tau)}, {v(vMq+q)}")

    if "dyn" in opts:
        A(f"s_lshl_b32 {s(sT0)}, {s(sW)}, 2")
        A(f"s_add_u32 {s(sT0)}, {s(sT0)}, {WV+256}")
        A(f"v_mov_b32 {v(vU0)}, {s(sT0)}")
        A(f"v_mov_b32 {v(vU1)}, {s(sT)}")
        A(f"v_xor_b32 {v(vR[0])}, 16, {v(vU0)}")
        A(f"ds_write_b32 {v(vU0)}, {v(vU1)}")
    g.wait_ds(tgv)
    for tau in range(4):
        for b in range(2):
            make_da(b, tau)
    A("s_waitcnt vmcnt(2) lgkmcnt(0)")
    stamp()
    A("s_barrier")
    stamp()
    A(f"ds_read_b128 {v(vTt,4)}, {v(vTtA)}")
    for mi, off in enumerate((8192, 16384)):
        for hh in range(2):
            A(f"ds_read_b64_tr_b16 {v(pCA[mi]+2*hh,2)}, {v(vCtr[hh])} offset:{off}")
    tg2 = g.mark()
    tg1 = []
    for t0 in range(2):
        for mi in range(2):
            for hh in range(2):
                A(f"ds_read_b64_tr_b16 {v(pWB[t0][mi]+2*hh,2)}, {v(vWtr[t0^hh])} offset:{mi*16384+hh*1024}")
        tg1.append(g.mark())
    for q in range(4):
        A(f"ds_read_b64 {v(vW2+2*q,2)}, {v(vWVr)} offset:{32*q}")
    A(f"ds_read_b32 {v(vB1)}, {v(vB1)}")
    if "glate" not in opts:
        gather(2)
    A(f"s_lshl_b32 {s(sB2v)}, {s(sB2v)}, 16")
    A(f"s_mov_b32 {s(sT0)}, 0x80008000")

    g.wait_ds(tg2)
    for r in range(4):
        A(f"v_xor_b32 {v(vTn+r)}, {s(sT0)}, {v(vTt+r)}")
    A(f"v_mfma_f32_16x16x32_bf16 {v(vPD[2],4)}, {v(pCA[0],4)}, {v(vTt,4)}, 0")
    A(f"v_mfma_f32_16x16x32_bf16 {v(vPD[2],4)}, {v(pCA[1],4)}, {v(vTn,4)}, {v(vPD[2],4)}")
    for t0 in range(2):
        g.wait_ds(tg1[t0])
        A(f"v_mfma_f32_16x16x32_bf16 {v(vPD[t0],4)}, {v(vKI,4)}, {v(pWB[t0][0],4)}, 0")
        A(f"v_mfma_f32_16x16x32_bf16 {v(vPD[t0],4)}, {v(vKI,4)}, {v(pWB[t0][1],4)}, {v(vPD[t0],4)}")

    L = 4
    R = L + 1
    tt = {}

    def issue_wd(k):
        tau, jt = k // 4, k % 4
        wd, c = opq[k % R]
        for hh in range(2):
            A(f"ds_read_b64_tr_b16 {v(wd+2*hh,2)}, {v(aWd[(tau&1)^hh])} offset:{(tau>>1)*4096+hh*1024+jt*256}")

    def issue_c(k):
        tau, jt = k // 4, k % 4
        wd, c = opq[k % R]
        A(f"ds_read_b128 {v(c,4)}, {v(aWR)} offset:{(tau*4+jt)*1024}")
        tt[k] = g.mark()

    A(f"ds_write_b128 {v(vCw)}, {v(vPD[2],4)}")
    A(f"ds_write_b128 {v(vWw)}, {v(vPD[0],4)}")
    A(f"ds_write_b128 {v(vWw)}, {v(vPD[1],4)} offset:4096")
    tgw = g.mark()
    for k in range(L):
        issue_wd(k)
    if "glate" not in opts:
        gather(3)
    for r in range(4):
        A(f"v_mov_b32 {v(vB2C+r)}, {s(sB2v)}")
    stamp()
    g.wait_ds(tgw)
    A("s_barrier")
    stamp()
    for k in range(L):
        issue_c(k)
    A(f"ds_read_b64 {v(vCt,2)}, {v(vCS)}")
    A(f"ds_read_b64 {v(vCt+2,2)}, {v(vCS)} offset:{16*CP}")
    if "dyn" in opts:
        A(f"ds_read_b32 {v(vR[0])}, {v(vR[0])}")
    tgc = g.mark()
    gather(2 if "glate" in opts else 4)

    def cvts(k):
        tau, jt = k // 4, k % 4
        for b in range(2):
            d = dq[k % 3][b]
            o = vWeff[b] + (jt * 2 + (tau >> 1)) * 4 + 2 * (tau & 1)
            A(f"v_cvt_pk_bf16_f32 {v(o)}, {v(d)}, {v(d+1)}")
            A(f"v_cvt_pk_bf16_f32 {v(o+1)}, {v(d+2)}, {v(d+3)}")

    stag = [o for o in opts if o.startswith("stag")]
    if stag:
        A(f"s_cmp_ge_u32 {s(sW)}, 4")
        A("s_cselect_b64 vcc, -1, 0")
        if "hi" in stag[0]:
            A("s_cbranch_scc1 L_sp")
            A("s_setprio 2")
            g.raw("L_sp:")
    for k in range(16):
        tau, jt = k // 4, k % 4
        g.wait_ds(tt[k])
        wd, c = opq[k % R]
        for b in range(2):
            A(f"v_mfma_f32_16x16x32_bf16 {v(dq[k%3][b],4)}, {v(daq[b][tau],4)}, {v(wd,4)}, {v(c,4)}")
        kn = k + L
        if kn < 16:
            issue_wd(kn)
            issue_c(kn)
        if "glate" in opts and k in (2, 4, 6):
            gather(2 + k // 2)
        if k == 1:
            if "glate" not in opts:
                gather(5)
            g.wait_ds(tgc)
            A(f"v_lshlrev_b32 {v(vT0)}, 16, {v(vB1)}")
            A(f"v_and_b32 {v(vT1)}, 0xffff0000, {v(vB1)}")
            A(f"v_add_f32 {v(vCt)}, {v(vCt)}, {v(vCt+2)}")
            A(f"v_add_f32 {v(vCt+1)}, {v(vCt+1)}, {v(vCt+3)}")
            A(f"v_add_f32 {v(vCt)}, {v(vCt)}, {v(vT0)}")
            A(f"v_add_f32 {v(vCt+1)}, {v(vCt+1)}, {v(vT1)}")
            A(f"v_mul_f32 {v(vCt)}, {KB}, {v(vCt)}")
            A(f"v_mul_f32 {v(vCt+1)}, {KB}, {v(vCt+1)}")
            A(f"ds_write_b64 {v(vCS)}, {v(vCt,2)}")
        if k == (15 if 'clate' in opts else 14):
            for b in range(2):
                for j2 in range(4):
                    A(f"ds_read_b128 {v(vCr[b][j2],4)}, {v(vC0)} offset:{b*CP+j2*64}")
        if k >= 1:
            cvts(k - 1)
        if stag and k < 12:
            A(f"s_cbranch_vccz L_sk{k}")
            A("s_waitcnt lgkmcnt(0)")
            g.raw(f"L_sk{k}:")
    if stag and "hi" in stag[0]:
        A("s_setprio 0")
    A(f"s_mov_b32 {s(sTi)}, 0")
    A(f"s_mov_b32 {s(sRel)}, {s(sN0)}")
    A(f"s_mov_b32 {s(sTB)}, {s(sHBw)}")
    A(f"s_add_u32 {s(sPB)}, {s(sHBw)}, {3*2048}")
    cvts(15)
    stamp()
    if "dyn" in opts:
        A(f"v_readfirstlane_b32 {s(sT0)}, {v(vR[0])}")
        A(f"s_lshl_b32 {s(sT1)}, {s(sT)}, 1")
        A(f"s_add_u32 {s(sT1)}, {s(sT1)}, {s(sH)}")
        A(f"s_lshl_b32 {s(sT0)}, {s(sT0)}, 1")
        A(f"s_cmp_le_u32 {s(sT1)}, {s(sT0)}")
        A("s_cbranch_scc1 L_np")
        A("s_setprio 1")
        g.raw("L_np:")
    if "prio" in opts:
        A(f"s_cmp_lt_u32 {s(sW)}, 4")
        A("s_cbranch_scc1 L_np")
        A("s_setprio 1")
        g.raw("L_np:")
    if "prio0" in opts:
        A(f"s_cmp_ge_u32 {s(sW)}, 4")
        A("s_cbranch_scc1 L_np")
        A("s_setprio 1")
        g.raw("L_np:")
    A(f"s_cmp_eq_u32 {s(sT)}, 0")
    g.branch("s_cbranch_scc1 L_epi")

    def gemm1(b, hb, cinit):
        for jt in range(4):
            for ks in range(2):
                c = vCr[b][jt] if (cinit and ks == 0) else vD1 + 4 * jt
                A(f"v_mfma_f32_16x16x32_bf16 {v(vD1+4*jt,4)}, {v(vWeff[b]+(jt*2+ks)*4,4)}, {v(hb+4*ks,4)}, {v(c,4)}")

    g.label("L_tile")
    if "rem" in opts:
        A(f"s_sub_u32 {s(sRem)}, {s(sT)}, {s(sTi)}")
        A("s_setprio 3")
        A(f"s_cmp_ge_u32 {s(sRem)}, 3")
        A("s_cbranch_scc1 L_pd")
        A("s_setprio 2")
        A(f"s_cmp_eq_u32 {s(sRem)}, 2")
        A("s_cbranch_scc1 L_pd")
        A("s_setprio 1")
        g.raw("L_pd:")
    if "rem4" in opts:
        A(f"s_sub_u32 {s(sRem)}, {s(sT)}, {s(sTi)}")
        A("s_setprio 3")
        A(f"s_cmp_ge_u32 {s(sRem)}, 4")
        A("s_cbranch_scc1 L_pd")
        A("s_setprio 2")
        A(f"s_cmp_eq_u32 {s(sRem)}, 3")
        A("s_cbranch_scc1 L_pd")
        A("s_setprio 1")
        A(f"s_cmp_eq_u32 {s(sRem)}, 2")
        A("s_cbranch_scc1 L_pd")
        A("s_setprio 0")
        g.raw("L_pd:")
    A(f"v_add_u32 {v(vBA)}, {s(sTB)}, {v(vBoff)}")
    A(f"s_sub_u32 {s(sRem)}, {s(sT3)}, {s(sTi)}")
    A(f"v_add_u32 {v(vTRA)}, {s(sTB)}, {v(vTRoff)}")
    A("s_waitcnt vmcnt(4)")
    A(f"s_cmp_ge_u32 {s(sRem)}, 2")
    A("s_cbranch_scc1 L_dataok")
    A("s_waitcnt vmcnt(2)")
    A(f"s_cmp_eq_u32 {s(sRem)}, 1")
    A("s_cbranch_scc1 L_dataok")
    A("s_waitcnt vmcnt(0)")
    g.raw("L_dataok:")
    if debug:
        A(f"s_cmp_lg_u32 {s(sTi)}, 0")
        A("s_cbranch_scc1 L_nost")
        stamp()
        g.raw("L_nost:")
    A(f"s_cmp_ge_i32 {s(sRel)}, 16")
    A("s_cbranch_scc1 L_p0")
    A(f"s_cmp_le_i32 {s(sRel)}, 0")
    A("s_cbranch_scc1 L_p1")
    A(f"v_cmp_gt_i32 vcc, {s(sRel)}, {v(vN)}")
    A(f"v_add_u32 {v(vCA)}, {CP}, {v(vC0)}")
    A(f"v_cndmask_b32 {v(vCA)}, {v(vCA)}, {v(vC0)}, vcc")
    A(f"v_cndmask_b32 {v(vBA1)}, {v(vBA)}, {v(vZoff)}, vcc")
    A(f"v_cndmask_b32 {v(vBA)}, {v(vZoff)}, {v(vBA)}, vcc")
    for jt in range(4):
        A(f"ds_read_b128 {v(vD1+4*jt,4)}, {v(vCA)} offset:{jt*64}")
    A(f"ds_read_b128 {v(vHB1,4)}, {v(vBA1)}")
    A(f"ds_read_b128 {v(vHB1+4,4)}, {v(vBA1)} offset:512")
    A(f"ds_read_b128 {v(vHB,4)}, {v(vBA)}")
    A(f"ds_read_b128 {v(vHB+4,4)}, {v(vBA)} offset:512")
    A("s_waitcnt lgkmcnt(2)")
    gemm1(1, vHB1, False)
    A("s_waitcnt lgkmcnt(0)")
    gemm1(0, vHB, False)
    A("s_branch L_fin")
    g.raw("L_p0:")
    A(f"ds_read_b128 {v(vHB,4)}, {v(vBA)}")
    A(f"ds_read_b128 {v(vHB+4,4)}, {v(vBA)} offset:512")
    A("s_waitcnt lgkmcnt(0)")
    gemm1(0, vHB, True)
    A("s_branch L_fin")
    g.raw("L_p1:")
    A(f"ds_read_b128 {v(vHB,4)}, {v(vBA)}")
    A(f"ds_read_b128 {v(vHB+4,4)}, {v(vBA)} offset:512")
    A("s_waitcnt lgkmcnt(0)")
    gemm1(1, vHB, True)
    g.raw("L_fin:")
    g.hist = [i for i in g.hist if i.kind == "mfma"][-8:]
    for dt in range(4):
        A(f"ds_read_b64_tr_b16 {v(vTRr+2*dt,2)}, {v(vTRA)} offset:{dt*256}")
    A(f"ds_read_b128 {v(vM,4)}, {v(vMA)}")
    A(f"ds_read_u16 {v(vR[0])}, {v(vRA)} offset:{1024+96}")
    A(f"ds_read_u16 {v(vR[1])}, {v(vRA)} offset:{1024+96+16}")
    for jt in range(4):
        d = vD1 + 4 * jt
        for r in range(4):
            A(f"v_exp_f32 {v(d+r)}, {v(d+r)}")
        for r in range(4):
            A(f"v_add_f32 {v(d+r)}, 1.0, {v(d+r)}")
        if jt > 0:
            p = vD1 + 4 * (jt - 1)
            A(f"v_cvt_pk_bf16_f32 {v(vH+2*(jt-1))}, {v(p)}, {v(p+1)}")
            A(f"v_cvt_pk_bf16_f32 {v(vH+2*(jt-1)+1)}, {v(p+2)}, {v(p+3)}")
        for r in range(4):
            A(f"v_rcp_f32 {v(d+r)}, {v(d+r)}")
            if jt == 2 and r == 1:
                A(f"v_mfma_f32_16x16x32_bf16 {v(vD2,4)}, {v(vH,4)}, {v(vW2,4)}, {v(vB2C,4)}")
    p = vD1 + 12
    A(f"s_add_u32 {s(sT0)}, {s(sTi)}, 3")
    A(f"v_cvt_pk_bf16_f32 {v(vH+6)}, {v(p)}, {v(p+1)}")
    A(f"v_cvt_pk_bf16_f32 {v(vH+7)}, {v(p+2)}, {v(p+3)}")
    A(f"v_add_u32 {v(vMA)}, 64, {v(vMA)}")
    A("s_waitcnt lgkmcnt(0)")
    A(f"v_mfma_f32_16x16x32_bf16 {v(vD2,4)}, {v(vH+4,4)}, {v(vW2+4,4)}, {v(vD2,4)}")
    A(f"s_cmp_ge_u32 {s(sT0)}, {s(sT)}")
    A("s_cbranch_scc1 L_nopf")
    A(f"s_mov_b32 m0, {s(sPB)}")
    A(f"v_add_u32 {v(vR[0])}, {v(vR[0])}, {v(vHC)}")
    A(f"v_add_u32 {v(vR[1])}, {v(vR[1])}, {v(vHC)}")
    A(f"buffer_load_dwordx4 {v(vR[0])}, {s(sSRD,4)}, {s(sHo)} offen nt lds")
    A("s_add_u32 m0, m0, 1024")
    A(f"v_add_u32 {v(vRA)}, 32, {v(vRA)}")
    A(f"buffer_load_dwordx4 {v(vR[1])}, {s(sSRD,4)}, {s(sHo)} offen nt lds")
    A(f"s_add_u32 {s(sPB)}, {s(sPB)}, 2048")
    A(f"s_cmp_eq_u32 {s(sT0)}, 4")
    A(f"s_cselect_b32 {s(sPB)}, {s(sOVw)}, {s(sPB)}")
    g.raw("L_nopf:")
    g.hist = [i for i in g.hist if i.kind == "mfma"][-1:]
    A(f"s_add_u32 {s(sTi)}, {s(sTi)}, 1")
    A(f"s_sub_u32 {s(sRel)}, {s(sRel)}, 16")
    A(f"s_add_u32 {s(sTB)}, {s(sTB)}, 2048")
    A(f"s_cmp_eq_u32 {s(sTi)}, 5")
    A(f"s_cselect_b32 {s(sTB)}, {s(sOVw)}, {s(sTB)}")
    for r in range(4):
        A(f"v_mul_f32 {v(vM+r)}, {v(vD2+r)}, {v(vM+r)}")
    A(f"v_cvt_pk_bf16_f32 {v(vS)}, {v(vM)}, {v(vM+1)}")
    A(f"v_cvt_pk_bf16_f32 {v(vS+1)}, {v(vM+2)}, {v(vM+3)}")
    A(f"s_cmp_lt_u32 {s(sTi)}, {s(sT)}")
    for dt in range(4):
        A(f"v_mfma_f32_16x16x16_bf16 {v(vD3+4*dt,4)}, {v(vTRr+2*dt,2)}, {v(vS,2)}, {v(vD3+4*dt,4)}")
    A("s_cbranch_scc1 L_tile")

    g.label("L_epi")
    stamp()
    vO = vD1
    for dt in range(4):
        A(f"v_cvt_pk_bf16_f32 {v(vO+2*dt)}, {v(vD3+4*dt)}, {v(vD3+4*dt+1)}")
        A(f"v_cvt_pk_bf16_f32 {v(vO+2*dt+1)}, {v(vD3+4*dt+2)}, {v(vD3+4*dt+3)}")
        if dt > 0:
            A(f"v_cndmask_b32 {v(vO)}, {v(vO)}, {v(vO+2*dt)}, {s(sSel[dt-1],2)}")
            A(f"v_cndmask_b32 {v(vO+1)}, {v(vO+1)}, {v(vO+2*dt+1)}, {s(sSel[dt-1],2)}")
    A("s_mov_b32 exec_lo, 0x0f0f0f0f")
    A("s_mov_b32 exec_hi, 0x0f0f0f0f")
    A(f"global_store_dwordx2 {v(vOA)}, {v(vO,2)}, {s(sOb,2)}")
    if debug:
        vX = P[4]
        A("s_waitcnt vmcnt(0)")
        A(f"s_memrealtime {s(sRT+2,2)}")
        A("s_waitcnt lgkmcnt(0)")
        A("s_mov_b64 exec, 1")
        for i in range(1, NST):
            A(f"s_sub_u32 {s(sST+2*i)}, {s(sST+2*i)}, {s(sST)}")
        A(f"s_lshl_b32 {s(sT0)}, s2, 3")
        A(f"s_add_u32 {s(sT0)}, {s(sT0)}, {s(sW)}")
        A(f"s_lshl_b32 {s(sT0)}, {s(sT0)}, 6")
        A(f"v_mov_b32 {v(vT0)}, {s(sT0)}")
        for i in range(4):
            A(f"v_mov_b32 {v(vX+i)}, {s(sRT+i)}")
        for i in range(1, NST):
            A(f"v_mov_b32 {v(vX+3+i)}, {s(sST+2*i)}")
        for i in range(4):
            A(f"global_store_dwordx4 {v(vT0)}, {v(vX+4*i,4)}, {s(sWS,2)} offset:{16*i}")
    g.raw("L_end:")
    g.raw("    s_endpgm")
    nv = (g.nv + 7) // 8 * 8
    assert nv <= 256, g.nv
    g.raw('.section .rodata,"a"')
    g.raw(".p2align 6")
    g.raw(f".amdhsa_kernel {KN}")
    g.raw(f"  .amdhsa_next_free_vgpr {nv}")
    g.raw(f"  .amdhsa_next_free_sgpr {max(g.ns, 32)}")
    g.raw(f"  .amdhsa_accum_offset {nv}")
    g.raw("  .amdhsa_group_segment_fixed_size 0")
    g.raw("  .amdhsa_kernarg_size 80")
    g.raw("  .amdhsa_user_sgpr_count 2")
    g.raw("  .amdhsa_user_sgpr_kernarg_segment_ptr 1")
    g.raw("  .amdhsa_system_sgpr_workgroup_id_x 1")
    g.raw("  .amdhsa_float_denorm_mode_32 3")
    g.raw("  .amdhsa_float_denorm_mode_16_64 3")
    g.raw(".end_amdhsa_kernel")
    sys.stderr.write(f"vgprs {g.nv} sgprs {g.ns} nops {g.nops} lds {LDS_BYTES} stamps {stamp_i[0]}\n")
    return g.text()


if __name__ == "__main__":
    out = sys.argv[1] if len(sys.argv) > 1 else "standalone__sequential_behavior_din__recsys.s"
    open(out, "w").write(gen(debug=("--debug" in sys.argv), opts=[a[2:] for a in sys.argv if a.startswith("--")]))
```
